```python
import torch

def _softmax(x, axis=-1):
    return torch.softmax(x, dim=axis)
def _gelu(x):
    return torch.nn.functional.gelu(x, approximate="tanh")
def _silu(x):
    return torch.nn.functional.silu(x)
def _sigmoid(x):
    return torch.sigmoid(x)
def _layernorm(x, axis=-1, eps=1e-5):
    m = x.mean(dim=axis, keepdim=True)
    v = x.var(dim=axis, keepdim=True, unbiased=False)
    return (x - m) / torch.sqrt(v + eps)
def _scatter_add(tgt, idx, src, axis=0):
    return tgt.clone().index_add_(axis, idx, src)
def _segment_sum(src, seg, n):
    out = torch.zeros((n,) + src.shape[1:], dtype=src.dtype)
    return out.index_add_(0, seg, src)
def _pad(x, pw):
    flat = tuple(v for pair in reversed(pw) for v in pair)
    return torch.nn.functional.pad(x, flat)

kernel_name = 'standalone__gqa_softmax__near_ridge'

def setup_inputs():

    _w = (lambda a: (lambda t: t.to(torch.bfloat16) if t.is_floating_point() else t)(torch.as_tensor(a)))
    B, Hq, Hkv, Sq, Sk, D = 32, 32, 32, 192, 512, 128
    return {
        "q": _w((lambda *s: torch.randn(*s, dtype=torch.bfloat16) * 0.8)(B, Hq, Sq, D)),
        "k": _w((lambda *s: torch.randn(*s, dtype=torch.bfloat16) * 0.8)(B, Hkv, Sk, D)),
        "v": _w((lambda *s: torch.randn(*s, dtype=torch.bfloat16) * 0.05)(B, Hkv, Sk, D)),
    }

def reference(q, k, v):
    B, Hq, Sq, D = q.shape
    Hkv = k.shape[1]
    rep = Hq // Hkv
    k = (lambda x, n, axis: torch.repeat_interleave(x, n, dim=axis))(k, rep, axis=1)
    v = (lambda x, n, axis: torch.repeat_interleave(x, n, dim=axis))(v, rep, axis=1)
    scale = D ** -0.5
    scores = torch.einsum("bhqd,bhkd->bhqk", q, k) * scale
    p = _softmax(scores, axis=-1)
    return torch.einsum("bhqk,bhkd->bhqd", p, v)
```

```python
import sys, math, struct

def f2u(x):
    return struct.unpack("<I", struct.pack("<f", x))[0]

class Opt:
    nt_load = True
    nt_store = True
    compute = True
    nh = 2
    R = 5
    stride_map = False
    kpre = 8
    vpre = 6
    name = "standalone__gqa_softmax__near_ridge"

def gen(o):
    L = []
    def e(s=""):
        L.append("    " + s if s and not s.endswith(":") else s)
    nwg = 1024 // o.nh
    SLOT = 16384
    LDS = o.R * SLOT
    D = o.R - 1
    XB = 4 * (D - 1)
    ntl = " nt" if o.nt_load else ""
    nts = " nt" if o.nt_store else ""

    def O(T, qt): return (T * 3 + qt) * 4
    def Q(qt, ks): return 96 + (qt * 4 + ks) * 4
    def S(kt, qt): return 144 + (kt * 3 + qt) * 4
    def F(i): return 192 + (i % 8) * 4
    MC = [224, 225, 226]; LS = [227, 228, 229]
    KB, VB, DK, DV, LANE = 230, 231, 232, 233, 234
    A = [235, 236, 237, 238]
    TM = [239, 240, 241, 242, 243, 244, 245, 246, 247]
    def r4(b): return f"v[{b}:{b+3}]"
    def r2(b): return f"v[{b}:{b+1}]"
    SQ, SK, SV, SO = "s[4:7]", "s[8:11]", "s[12:15]", "s[16:19]"
    sW, sW4K, sCUR, sPREV, sIT, sH = "s20", "s21", "s22", "s23", "s24", "s25"
    sKV, sKVN, sQN, sOO, sC, sT, sHIST, sT0, sT1, sHEAD = "s26", "s27", "s28", "s29", "s30", "s31", "s32", "s33", "s34", "s35"
    OOB = 0x40000000
    uid = [0]
    def lab(p):
        uid[0] += 1
        return f"L_{p}_{uid[0]}"

    L.append(f"; @launch grid=({nwg},1,1) block=(256,1,1) lds={LDS}")
    L.append('.amdgcn_target "amdgcn-amd-amdhsa--gfx950"')
    L.append(".text")
    L.append(f".globl {o.name}_kernel")
    L.append(".p2align 8")
    L.append(f".type {o.name}_kernel,@function")
    L.append(f"{o.name}_kernel:")
    e(f"s_cmp_ge_u32 s2, {nwg}")
    e("s_cbranch_scc1 L_end")
    e("s_load_dwordx4 s[36:39], s[0:1], 0")
    e("s_load_dwordx4 s[40:43], s[0:1], 16")
    e(f"v_and_b32 v{LANE}, 63, v0")
    e(f"v_lshrrev_b32 v1, 6, v0")
    e("s_nop 0")
    e(f"v_readfirstlane_b32 {sW}, v1")
    e(f"v_and_b32 v2, 15, v{LANE}")
    e(f"v_lshrrev_b32 v3, 4, v{LANE}")
    e(f"s_lshl_b32 {sW4K}, {sW}, 12")
    e("v_lshrrev_b32 v4, 2, v2")
    e("v_and_b32 v5, 3, v2")
    e("v_lshlrev_b32 v6, 12, v4")
    e("v_lshl_add_u32 v6, v5, 8, v6")
    e("v_xor_b32 v7, v3, v2")
    e(f"v_lshl_add_u32 v{KB}, v7, 4, v6")
    e("v_lshlrev_b32 v6, 12, v3")
    e("v_lshl_add_u32 v6, v4, 8, v6")
    e("v_and_b32 v7, 1, v3")
    e("v_lshl_add_u32 v7, v7, 2, v4")
    e("v_lshlrev_b32 v7, 1, v7")
    e("v_lshrrev_b32 v8, 1, v5")
    e("v_xor_b32 v7, v7, v8")
    e("v_lshl_add_u32 v6, v7, 4, v6")
    e("v_and_b32 v8, 1, v2")
    e(f"v_lshl_add_u32 v{VB}, v8, 3, v6")
    e(f"s_lshl_b32 {sT0}, {sW}, 2")
    e(f"v_lshlrev_b32 v6, 8, v3")
    e(f"v_add_u32 v6, {sW4K}, v6")
    e(f"v_add_u32 v7, {sT0}, v3")
    e("v_xor_b32 v7, v7, v2")
    e(f"v_lshl_add_u32 v{DK}, v7, 4, v6")
    e(f"s_and_b32 {sT0}, {sW}, 1")
    e(f"s_lshl_b32 {sT0}, {sT0}, 2")
    e(f"v_add_u32 v7, {sT0}, v3")
    e("v_lshlrev_b32 v7, 1, v7")
    e("v_xor_b32 v7, v7, v2")
    e(f"v_lshl_add_u32 v{DV}, v7, 4, v6")
    if o.stride_map:
        e(f"s_mov_b32 {sHEAD}, s2")
    else:
        e(f"s_mul_i32 {sHEAD}, s2, {o.nh}")
    hstep = nwg if o.stride_map else 1
    e(f"s_mov_b32 {sC}, {hex(f2u(math.log2(math.e) / math.sqrt(128.0)))}")
    e(f"s_mov_b32 {sT}, 0x41000000")
    e(f"s_mov_b32 {sHIST}, 0")
    e(f"s_mov_b32 {sH}, 0")
    e("s_waitcnt lgkmcnt(0)")
    for (b, p, n) in ((4, 36, 50331648), (8, 38, 134217728), (12, 40, 134217728), (16, 42, 50331648)):
        e(f"s_mov_b32 s{b}, s{p}")
        e(f"s_and_b32 s{b+1}, s{p+1}, 0xffff")
        e(f"s_mov_b32 s{b+2}, {n}")
        e(f"s_mov_b32 s{b+3}, 0x20000")
    e(f"s_lshl_b32 {sKVN}, {sHEAD}, 17")
    e(f"s_mul_i32 {sQN}, {sHEAD}, 49152")

    def dma(srd, soff, voff):
        for j in range(4):
            off = f" offset:{1024*j}" if j else ""
            e(f"buffer_load_dwordx4 v{voff}, {srd}, {soff} offen{off}{ntl} lds")

    def stream(i):
        if i < 3: return ("Q", i)
        i -= 3
        return ("K" if i % 2 == 0 else "V", i // 2)
    for i in range(D):
        t, x = stream(i)
        e(f"s_add_u32 m0, {sW4K}, {i*SLOT}")
        if t == "Q":
            e(f"s_add_u32 {sT0}, {sQN}, {x*SLOT}"); dma(SQ, sT0, DK)
        elif t == "K":
            e(f"s_add_u32 {sT0}, {sKVN}, {x*SLOT}"); dma(SK, sT0, DK)
        else:
            e(f"s_add_u32 {sT0}, {sKVN}, {x*SLOT}"); dma(SV, sT0, DV)
    e(f"s_mov_b32 {sCUR}, {(o.R-1)*SLOT}")
    for i in range(96):
        e(f"v_mov_b32 v{i}, 0")
    for qt in range(3):
        e(f"v_mov_b32 v{LS[qt]}, 0")
        e(f"v_mov_b32 v{MC[qt]}, 0xff800000")

    def step_head(stores_this_step):
        done = lab("wd")
        e(f"s_bcnt1_i32_b32 {sT0}, {sHIST}")
        labs = [lab("w") for _ in range(4)]
        e(f"s_cmp_eq_u32 {sT0}, 0")
        e(f"s_cbranch_scc1 {labs[0]}")
        e(f"s_cmp_eq_u32 {sT0}, 1")
        e(f"s_cbranch_scc1 {labs[1]}")
        e(f"s_cmp_eq_u32 {sT0}, 2")
        e(f"s_cbranch_scc1 {labs[2]}")
        e(f"s_waitcnt vmcnt({XB+12})")
        e(f"s_branch {done}")
        e(f"{labs[2]}:")
        e(f"s_waitcnt vmcnt({XB+8})")
        e(f"s_branch {done}")
        e(f"{labs[1]}:")
        e(f"s_waitcnt vmcnt({XB+4})")
        e(f"s_branch {done}")
        e(f"{labs[0]}:")
        e(f"s_waitcnt vmcnt({XB})")
        e(f"{done}:")
        e(f"s_lshl_b32 {sHIST}, {sHIST}, 1")
        e(f"s_and_b32 {sHIST}, {sHIST}, {(1 << D) - 1}")
        e(f"s_mov_b32 {sPREV}, {sCUR}")
        e(f"s_add_u32 {sCUR}, {sCUR}, {SLOT}")
        e(f"s_cmp_eq_u32 {sCUR}, {LDS}")
        e(f"s_cselect_b32 {sCUR}, 0, {sCUR}")
        e(f"s_add_u32 m0, {sPREV}, {sW4K}")
        e("s_waitcnt lgkmcnt(0)")
        e("s_barrier")

    def refill_static(p):
        t = p + D
        if t < 19:
            ty, x = stream(t); nxt = False
        else:
            ty, x = stream(t - 19); nxt = True
        return ty, x, nxt

    def emit_refill(ty, xexpr_sgpr_or_const, nxt, dyn_it=None):
        pass

    def allreduce(op, x, t):
        for a, b in zip(x, t): e(f"v_mov_b32 v{b}, v{a}")
        e("s_nop 1")
        for a, b in zip(x, t): e(f"v_permlane16_swap_b32 v{a}, v{b}")
        for a, b in zip(x, t): e(f"{op} v{a}, v{a}, v{b}")
        for a, b in zip(x, t): e(f"v_mov_b32 v{b}, v{a}")
        e("s_nop 1")
        for a, b in zip(x, t): e(f"v_permlane32_swap_b32 v{a}, v{b}")
        for a, b in zip(x, t): e(f"{op} v{a}, v{a}, v{b}")

    e("L_head:")
    e(f"s_mov_b32 {sKV}, {sKVN}")
    for j in range(3):
        step_head(True)
        ty, x, nxt = refill_static(j)
        assert not nxt
        if ty == "Q":
            e(f"s_add_u32 {sT0}, {sQN}, {x*SLOT}"); dma(SQ, sT0, DK)
        elif ty == "K":
            e(f"s_add_u32 {sT0}, {sKV}, {x*SLOT}"); dma(SK, sT0, DK)
        else:
            e(f"s_add_u32 {sT0}, {sKV}, {x*SLOT}"); dma(SV, sT0, DV)
        e(f"v_and_b32 v{TM[0]}, 15, v{LANE}")
        e(f"v_lshrrev_b32 v{TM[1]}, 4, v{LANE}")
        e(f"s_add_u32 {sT1}, {sCUR}, {sW4K}")
        if o.compute:
            e(f"s_lshl_b32 {sT0}, {sW}, 2")
            e(f"v_and_b32 v{TM[2]}, 3, v{TM[0]}")
            e(f"v_add_u32 v{TM[2]}, {sT0}, v{TM[2]}")
            e(f"v_xor_b32 v{TM[2]}, v{TM[2]}, v{TM[1]}")
            e(f"v_lshlrev_b32 v{TM[3]}, 8, v{TM[0]}")
            e(f"v_lshl_add_u32 v{TM[2]}, v{TM[2]}, 4, v{TM[3]}")
            e(f"v_add_u32 v{A[0]}, {sT1}, v{TM[2]}")
            for ks in range(1, 4):
                e(f"v_xor_b32 v{A[ks]}, {ks<<6}, v{A[0]}")
            for ks in range(4):
                e(f"ds_read_b128 {r4(Q(j,ks))}, v{A[ks]}")
        skip = lab("nostore")
        e(f"s_cmp_eq_u32 {sH}, 0")
        e(f"s_cbranch_scc1 {skip}")
        e(f"s_or_b32 {sHIST}, {sHIST}, 1")
        if o.compute:
            allreduce("v_add_f32", [LS[j]], [TM[4]])
            e(f"v_rcp_f32 v{TM[4]}, v{LS[j]}")
            e(f"v_lshrrev_b32 v{TM[2]}, 1, v{TM[1]}")
            e(f"v_xor_b32 v{TM[2]}, v{TM[2]}, v{TM[0]}")
            e(f"v_lshl_add_u32 v{TM[2]}, v{TM[2]}, 4, v{TM[3]}")
            e(f"v_and_b32 v{TM[5]}, 1, v{TM[1]}")
            e(f"v_lshl_add_u32 v{TM[2]}, v{TM[5]}, 3, v{TM[2]}")
            e(f"v_add_u32 v{TM[2]}, {sT1}, v{TM[2]}")
            for T in range(8):
                b = O(T, j)
                for i in range(4):
                    e(f"v_mul_f32 v{b+i}, v{b+i}, v{TM[4]}")
            for T in range(8):
                b = O(T, j)
                e(f"v_cvt_pk_bf16_f32 v{b}, v{b}, v{b+1}")
                e(f"v_cvt_pk_bf16_f32 v{b+1}, v{b+2}, v{b+3}")
            e("s_waitcnt lgkmcnt(0)")
            for T in range(8):
                b = O(T, j)
                a = A[T % 4]
                e(f"v_xor_b32 v{a}, {T<<5}, v{TM[2]}")
                e(f"ds_write_b64 v{a}, {r2(b)}")
            e(f"v_xor_b32 v{TM[2]}, v{TM[0]}, v{TM[1]}")
            e(f"v_lshlrev_b32 v{TM[2]}, 4, v{TM[2]}")
            e(f"v_lshl_add_u32 v{TM[2]}, v{TM[1]}, 8, v{TM[2]}")
            e(f"v_add_u32 v{TM[2]}, {sT1}, v{TM[2]}")
            e("s_waitcnt lgkmcnt(0)")
            for jj in range(4):
                e(f"v_xor_b32 v{A[jj]}, {jj<<6}, v{TM[2]}")
                e(f"ds_read_b128 {r4(F(jj))}, v{A[jj]} offset:{jj*1024}")
            for T in range(8):
                b = O(T, j)
                for i in range(4):
                    e(f"v_mov_b32 v{b+i}, 0")
            e(f"v_mov_b32 v{LS[j]}, 0")
            e(f"v_mov_b32 v{MC[j]}, 0xff800000")
        e(f"v_lshlrev_b32 v{TM[2]}, 4, v{LANE}")
        e(f"v_add_u32 v{TM[2]}, {sW4K}, v{TM[2]}")
        e(f"s_add_u32 {sT0}, {sOO}, {j*SLOT}")
        for jj in range(4):
            if o.compute:
                e(f"s_waitcnt lgkmcnt({3-jj})")
            e(f"buffer_store_dwordx4 {r4(F(jj))}, v{TM[2]}, {SO}, {sT0} offen offset:{jj*1024}{nts}")
        e(f"{skip}:")
    e(f"s_cmp_eq_u32 {sH}, {o.nh}")
    e("s_cbranch_scc1 L_end")
    e(f"s_mov_b32 {sOO}, {sQN}")
    e(f"s_add_u32 {sH}, {sH}, 1")
    e(f"s_add_u32 {sKVN}, {sKVN}, {hstep*131072}")
    e(f"s_add_u32 {sQN}, {sQN}, {hstep*49152}")
    e(f"s_cmp_eq_u32 {sH}, {o.nh}")
    e(f"s_cselect_b32 {sKVN}, {OOB}, {sKVN}")
    e(f"s_cselect_b32 {sQN}, {OOB}, {sQN}")
    e(f"s_mov_b32 {sIT}, 0")

    def dyn_refill(is_v):
        cases = {}
        for it in range(8):
            cases[it] = refill_static(3 + 2 * it + is_v)
        reg = [it for it in range(8) if not cases[it][2]]
        ty0 = cases[reg[0]][0]; delta = cases[reg[0]][1] - reg[0]
        for it in reg:
            assert cases[it][0] == ty0 and cases[it][1] == it + delta
        nreg = len(reg); assert reg == list(range(nreg))
        done = lab("rd")
        spec = [(it, lab("rs")) for it in range(nreg, 8)]
        for it, lb in spec:
            e(f"s_cmp_eq_u32 {sIT}, {it}")
            e(f"s_cbranch_scc1 {lb}")
        e(f"s_lshl_b32 {sT0}, {sIT}, 14")
        e(f"s_add_u32 {sT0}, {sT0}, {sKV}")
        e(f"s_add_u32 {sT0}, {sT0}, {delta*SLOT}")
        dma(SK if ty0 == "K" else SV, sT0, DK if ty0 == "K" else DV)
        if spec: e(f"s_branch {done}")
        for k, (it, lb) in enumerate(spec):
            e(f"{lb}:")
            ty, x, nxt = cases[it]
            if ty == "Q":
                e(f"s_add_u32 {sT0}, {sQN}, {x*SLOT}"); dma(SQ, sT0, DK)
            elif ty == "K":
                e(f"s_add_u32 {sT0}, {sKVN}, {x*SLOT}"); dma(SK, sT0, DK)
            else:
                e(f"s_add_u32 {sT0}, {sKVN}, {x*SLOT}"); dma(SV, sT0, DV)
            if k + 1 < len(spec): e(f"s_branch {done}")
        e(f"{done}:")

    e("L_iter:")
    step_head(False)
    if o.compute:
        e(f"v_add_u32 v{A[0]}, {sCUR}, v{KB}")
        for ks in range(1, 4):
            e(f"v_xor_b32 v{A[ks]}, {ks<<6}, v{A[0]}")
        def kread(f):
            kt, ks = f >> 2, f & 3
            off = f" offset:{kt*1024}" if kt else ""
            e(f"ds_read_b128 {r4(F(f))}, v{A[ks]}{off}")
        for f in range(o.kpre): kread(f)
    dyn_refill(0)
    if o.compute:
        for f in range(16):
            kt, ks = f >> 2, f & 3
            issued = min(16, o.kpre + f)
            e(f"s_waitcnt lgkmcnt({issued - f - 1})")
            for qt in range(3):
                c = "0" if ks == 0 else r4(S(kt, qt))
                e(f"v_mfma_f32_16x16x32_bf16 {r4(S(kt,qt))}, {r4(F(f))}, {r4(Q(qt,ks))}, {c}")
            if f + o.kpre < 16: kread(f + o.kpre)
        LM = [TM[0], TM[1], TM[2]]
        vals = [[S(kt, qt) + i for kt in range(4) for i in range(4)] for qt in range(3)]
        for qt in range(3):
            v = vals[qt]
            e(f"v_max3_f32 v{LM[qt]}, v{v[0]}, v{v[1]}, v{v[2]}")
        for k in range(6):
            for qt in range(3):
                v = vals[qt]
                e(f"v_max3_f32 v{LM[qt]}, v{LM[qt]}, v{v[3+2*k]}, v{v[4+2*k]}")
        for qt in range(3):
            e(f"v_max_f32 v{LM[qt]}, v{LM[qt]}, v{vals[qt][15]}")
        for qt in range(3):
            e(f"v_fma_f32 v{TM[3+qt]}, v{LM[qt]}, {sC}, -v{MC[qt]}")
        e(f"v_max3_f32 v{TM[3]}, v{TM[3]}, v{TM[4]}, v{TM[5]}")
        e(f"v_cmp_lt_f32 vcc, {sT}, v{TM[3]}")
        e("s_cbranch_vccnz L_rare")
        e("L_back:")
        for u in range(2):
            for qt in range(3):
                v = [S(2*u, qt) + i for i in range(4)] + [S(2*u+1, qt) + i for i in range(4)]
                for x in v: e(f"v_fma_f32 v{x}, v{x}, {sC}, -v{MC[qt]}")
                for x in v: e(f"v_exp_f32 v{x}, v{x}")
                e("s_nop 0")
                for x in v: e(f"v_add_f32 v{LS[qt]}, v{LS[qt]}, v{x}")
                b = S(2*u, qt)
                for jj in range(4):
                    e(f"v_cvt_pk_bf16_f32 v{b+jj}, v{v[2*jj]}, v{v[2*jj+1]}")
    step_head(False)
    if o.compute:
        e(f"v_add_u32 v{TM[0]}, {sCUR}, v{VB}")
        def vread(f):
            T, u = f >> 1, f & 1
            a = A[T % 4]
            if u == 0:
                e(f"v_xor_b32 v{a}, {T<<5}, v{TM[0]}")
            for ee in range(2):
                off = 2048 * u + 1024 * ee
                offs = f" offset:{off}" if off else ""
                e(f"ds_read_b64_tr_b16 {r2(F(f)+2*ee)}, v{a}{offs}")
        for f in range(o.vpre): vread(f)
    dyn_refill(1)
    if o.compute:
        for f in range(16):
            T, u = f >> 1, f & 1
            issued = min(16, o.vpre + f)
            e(f"s_waitcnt lgkmcnt({2*(issued - f - 1)})")
            for qt in range(3):
                e(f"v_mfma_f32_16x16x32_bf16 {r4(O(T,qt))}, {r4(F(f))}, {r4(S(2*u,qt))}, {r4(O(T,qt))}")
            if f + o.vpre < 16: vread(f + o.vpre)
    e(f"s_add_u32 {sIT}, {sIT}, 1")
    e(f"s_cmp_lt_u32 {sIT}, 8")
    e("s_cbranch_scc1 L_iter")
    e("s_nop 7")
    e("s_branch L_head")

    if o.compute:
        e("L_rare:")
        LM = [TM[0], TM[1], TM[2]]
        allreduce("v_max_f32", LM, [TM[3], TM[4], TM[5]])
        for qt in range(3):
            e(f"v_mul_f32 v{LM[qt]}, {sC}, v{LM[qt]}")
        for qt in range(3):
            e(f"v_max_f32 v{LM[qt]}, v{LM[qt]}, v{MC[qt]}")
        for qt in range(3):
            e(f"v_sub_f32 v{TM[3+qt]}, v{MC[qt]}, v{LM[qt]}")
        for qt in range(3):
            e(f"v_exp_f32 v{TM[3+qt]}, v{TM[3+qt]}")
        for qt in range(3):
            e(f"v_mov_b32 v{MC[qt]}, v{LM[qt]}")
        for qt in range(3):
            e(f"v_mul_f32 v{LS[qt]}, v{LS[qt]}, v{TM[3+qt]}")
        for T in range(8):
            for qt in range(3):
                for i in range(4):
                    e(f"v_mul_f32 v{O(T,qt)+i}, v{O(T,qt)+i}, v{TM[3+qt]}")
        e("s_branch L_back")
    e("L_end:")
    e("s_endpgm")
    L.append('.section .rodata,"a"')
    L.append(".p2align 6")
    L.append(f".amdhsa_kernel {o.name}_kernel")
    L.append("  .amdhsa_next_free_vgpr 256")
    L.append("  .amdhsa_next_free_sgpr 48")
    L.append("  .amdhsa_accum_offset 256")
    L.append("  .amdhsa_group_segment_fixed_size 0")
    L.append("  .amdhsa_kernarg_size 48")
    L.append("  .amdhsa_user_sgpr_count 2")
    L.append("  .amdhsa_user_sgpr_kernarg_segment_ptr 1")
    L.append("  .amdhsa_system_sgpr_workgroup_id_x 1")
    L.append(".end_amdhsa_kernel")
    return "\n".join(L) + "\n"

if __name__ == "__main__":
    o = Opt()
    out = sys.argv[1]
    for a in sys.argv[2:]:
        k, v = a.split("=")
        cur = getattr(o, k)
        setattr(o, k, (v in ("1", "True", "true")) if isinstance(cur, bool) else type(cur)(v))
    open(out, "w").write(gen(o))
```

```python
import sys, math, struct

def f2u(x):
    return struct.unpack("<I", struct.pack("<f", x))[0]

class Opt:
    ldpol = "nt"
    stpol = "nt"
    rot = 0
    vgpr = 256
    compute = True
    nh = 2
    R = 5
    stride_map = False
    kpre = 8
    vpre = 6
    name = "standalone__gqa_softmax__near_ridge"

def gen(o):
    L = []
    def e(s=""):
        L.append("    " + s if s and not s.endswith(":") else s)
    nwg = 1024 // o.nh
    SLOT = 16384
    LDS = o.R * SLOT
    D = o.R - 1
    XB = 4 * (D - 1)
    ntl = (" " + o.ldpol.replace("_", " ")) if o.ldpol not in ("", "none") else ""
    nts = (" " + o.stpol.replace("_", " ")) if o.stpol not in ("", "none") else ""

    def O(T, qt): return (T * 3 + qt) * 4
    def Q(qt, ks): return 96 + (qt * 4 + ks) * 4
    def S(kt, qt): return 144 + (kt * 3 + qt) * 4
    def F(i): return 192 + (i % 8) * 4
    MC = [224, 225, 226]; LS = [227, 228, 229]
    KB, VB, DK, DV, LANE = 230, 231, 232, 233, 234
    A = [235, 236, 237, 238]
    TM = [239, 240, 241, 242, 243, 244, 245, 246, 247]
    def r4(b): return f"v[{b}:{b+3}]"
    def r2(b): return f"v[{b}:{b+1}]"
    SQ, SK, SV, SO = "s[4:7]", "s[8:11]", "s[12:15]", "s[16:19]"
    sW, sW4K, sCUR, sPREV, sIT, sH = "s20", "s21", "s22", "s23", "s24", "s25"
    sKV, sKVN, sQN, sOO, sC, sT, sHIST, sT0, sT1, sHEAD = "s26", "s27", "s28", "s29", "s30", "s31", "s32", "s33", "s34", "s35"
    sROT = "s44"
    OOB = 0x40000000
    uid = [0]
    def lab(p):
        uid[0] += 1
        return f"L_{p}_{uid[0]}"

    L.append(f"; @launch grid=({nwg},1,1) block=(256,1,1) lds={LDS}")
    L.append('.amdgcn_target "amdgcn-amd-amdhsa--gfx950"')
    L.append(".text")
    L.append(f".globl {o.name}_kernel")
    L.append(".p2align 8")
    L.append(f".type {o.name}_kernel,@function")
    L.append(f"{o.name}_kernel:")
    e(f"s_cmp_ge_u32 s2, {nwg}")
    e("s_cbranch_scc1 L_end")
    e("s_load_dwordx4 s[36:39], s[0:1], 0")
    e("s_load_dwordx4 s[40:43], s[0:1], 16")
    e(f"v_and_b32 v{LANE}, 63, v0")
    e(f"v_lshrrev_b32 v1, 6, v0")
    e("s_nop 0")
    e(f"v_readfirstlane_b32 {sW}, v1")
    e(f"v_and_b32 v2, 15, v{LANE}")
    e(f"v_lshrrev_b32 v3, 4, v{LANE}")
    e(f"s_lshl_b32 {sW4K}, {sW}, 12")
    e("v_lshrrev_b32 v4, 2, v2")
    e("v_and_b32 v5, 3, v2")
    e("v_lshlrev_b32 v6, 12, v4")
    e("v_lshl_add_u32 v6, v5, 8, v6")
    e("v_xor_b32 v7, v3, v2")
    e(f"v_lshl_add_u32 v{KB}, v7, 4, v6")
    e("v_lshlrev_b32 v6, 12, v3")
    e("v_lshl_add_u32 v6, v4, 8, v6")
    e("v_and_b32 v7, 1, v3")
    e("v_lshl_add_u32 v7, v7, 2, v4")
    e("v_lshlrev_b32 v7, 1, v7")
    e("v_lshrrev_b32 v8, 1, v5")
    e("v_xor_b32 v7, v7, v8")
    e("v_lshl_add_u32 v6, v7, 4, v6")
    e("v_and_b32 v8, 1, v2")
    e(f"v_lshl_add_u32 v{VB}, v8, 3, v6")
    e(f"s_lshl_b32 {sT0}, {sW}, 2")
    e(f"v_lshlrev_b32 v6, 8, v3")
    e(f"v_add_u32 v6, {sW4K}, v6")
    e(f"v_add_u32 v7, {sT0}, v3")
    e("v_xor_b32 v7, v7, v2")
    e(f"v_lshl_add_u32 v{DK}, v7, 4, v6")
    e(f"s_and_b32 {sT0}, {sW}, 1")
    e(f"s_lshl_b32 {sT0}, {sT0}, 2")
    e(f"v_add_u32 v7, {sT0}, v3")
    e("v_lshlrev_b32 v7, 1, v7")
    e("v_xor_b32 v7, v7, v2")
    e(f"v_lshl_add_u32 v{DV}, v7, 4, v6")
    if o.stride_map:
        e(f"s_mov_b32 {sHEAD}, s2")
    else:
        e(f"s_mul_i32 {sHEAD}, s2, {o.nh}")
    hstep = nwg if o.stride_map else 1
    e(f"s_mov_b32 {sC}, {hex(f2u(math.log2(math.e) / math.sqrt(128.0)))}")
    e(f"s_mov_b32 {sT}, 0x41000000")
    e(f"s_mov_b32 {sHIST}, 0")
    e(f"s_mov_b32 {sH}, 0")
    e("s_waitcnt lgkmcnt(0)")
    for (b, p, n) in ((4, 36, 50331648), (8, 38, 134217728), (12, 40, 134217728), (16, 42, 50331648)):
        e(f"s_mov_b32 s{b}, s{p}")
        e(f"s_and_b32 s{b+1}, s{p+1}, 0xffff")
        e(f"s_mov_b32 s{b+2}, {n}")
        e(f"s_mov_b32 s{b+3}, 0x20000")
    e(f"s_lshl_b32 {sKVN}, {sHEAD}, 17")
    e(f"s_mul_i32 {sQN}, {sHEAD}, 49152")

    if o.rot == 0: e(f"s_mov_b32 {sROT}, 0")
    elif o.rot == 1: e(f"s_and_b32 {sROT}, s2, 7")
    elif o.rot == 2:
        e(f"s_lshr_b32 {sROT}, s2, 3")
        e(f"s_and_b32 {sROT}, {sROT}, 7")
    def kvoff(base, x, dyn=False):
        if dyn:
            e(f"s_add_u32 {sT0}, {sIT}, {sROT}")
            e(f"s_add_u32 {sT0}, {sT0}, {x}")
        else:
            e(f"s_add_u32 {sT0}, {sROT}, {x}")
        e(f"s_and_b32 {sT0}, {sT0}, 7")
        e(f"s_lshl_b32 {sT0}, {sT0}, 14")
        e(f"s_add_u32 {sT0}, {sT0}, {base}")
    def dma(srd, soff, voff):
        for j in range(4):
            off = f" offset:{1024*j}" if j else ""
            e(f"buffer_load_dwordx4 v{voff}, {srd}, {soff} offen{off}{ntl} lds")

    def stream(i):
        if i < 3: return ("Q", i)
        i -= 3
        return ("K" if i % 2 == 0 else "V", i // 2)
    for i in range(D):
        t, x = stream(i)
        e(f"s_add_u32 m0, {sW4K}, {i*SLOT}")
        if t == "Q":
            e(f"s_add_u32 {sT0}, {sQN}, {x*SLOT}"); dma(SQ, sT0, DK)
        elif t == "K":
            kvoff(sKVN, x); dma(SK, sT0, DK)
        else:
            kvoff(sKVN, x); dma(SV, sT0, DV)
    e(f"s_mov_b32 {sCUR}, {(o.R-1)*SLOT}")
    for i in range(96):
        e(f"v_mov_b32 v{i}, 0")
    for qt in range(3):
        e(f"v_mov_b32 v{LS[qt]}, 0")
        e(f"v_mov_b32 v{MC[qt]}, 0xff800000")

    def step_head(stores_this_step):
        done = lab("wd")
        e(f"s_bcnt1_i32_b32 {sT0}, {sHIST}")
        labs = [lab("w") for _ in range(4)]
        e(f"s_cmp_eq_u32 {sT0}, 0")
        e(f"s_cbranch_scc1 {labs[0]}")
        e(f"s_cmp_eq_u32 {sT0}, 1")
        e(f"s_cbranch_scc1 {labs[1]}")
        e(f"s_cmp_eq_u32 {sT0}, 2")
        e(f"s_cbranch_scc1 {labs[2]}")
        e(f"s_waitcnt vmcnt({XB+12})")
        e(f"s_branch {done}")
        e(f"{labs[2]}:")
        e(f"s_waitcnt vmcnt({XB+8})")
        e(f"s_branch {done}")
        e(f"{labs[1]}:")
        e(f"s_waitcnt vmcnt({XB+4})")
        e(f"s_branch {done}")
        e(f"{labs[0]}:")
        e(f"s_waitcnt vmcnt({XB})")
        e(f"{done}:")
        e(f"s_lshl_b32 {sHIST}, {sHIST}, 1")
        e(f"s_and_b32 {sHIST}, {sHIST}, {(1 << D) - 1}")
        e(f"s_mov_b32 {sPREV}, {sCUR}")
        e(f"s_add_u32 {sCUR}, {sCUR}, {SLOT}")
        e(f"s_cmp_eq_u32 {sCUR}, {LDS}")
        e(f"s_cselect_b32 {sCUR}, 0, {sCUR}")
        e(f"s_add_u32 m0, {sPREV}, {sW4K}")
        e("s_waitcnt lgkmcnt(0)")
        e("s_barrier")

    def refill_static(p):
        t = p + D
        if t < 19:
            ty, x = stream(t); nxt = False
        else:
            ty, x = stream(t - 19); nxt = True
        return ty, x, nxt

    def emit_refill(ty, xexpr_sgpr_or_const, nxt, dyn_it=None):
        pass

    def allreduce(op, x, t):
        for a, b in zip(x, t): e(f"v_mov_b32 v{b}, v{a}")
        e("s_nop 1")
        for a, b in zip(x, t): e(f"v_permlane16_swap_b32 v{a}, v{b}")
        for a, b in zip(x, t): e(f"{op} v{a}, v{a}, v{b}")
        for a, b in zip(x, t): e(f"v_mov_b32 v{b}, v{a}")
        e("s_nop 1")
        for a, b in zip(x, t): e(f"v_permlane32_swap_b32 v{a}, v{b}")
        for a, b in zip(x, t): e(f"{op} v{a}, v{a}, v{b}")

    e("L_head:")
    e(f"s_mov_b32 {sKV}, {sKVN}")
    for j in range(3):
        step_head(True)
        ty, x, nxt = refill_static(j)
        assert not nxt
        if ty == "Q":
            e(f"s_add_u32 {sT0}, {sQN}, {x*SLOT}"); dma(SQ, sT0, DK)
        elif ty == "K":
            kvoff(sKV, x); dma(SK, sT0, DK)
        else:
            kvoff(sKV, x); dma(SV, sT0, DV)
        e(f"v_and_b32 v{TM[0]}, 15, v{LANE}")
        e(f"v_lshrrev_b32 v{TM[1]}, 4, v{LANE}")
        e(f"s_add_u32 {sT1}, {sCUR}, {sW4K}")
        if o.compute:
            e(f"s_lshl_b32 {sT0}, {sW}, 2")
            e(f"v_and_b32 v{TM[2]}, 3, v{TM[0]}")
            e(f"v_add_u32 v{TM[2]}, {sT0}, v{TM[2]}")
            e(f"v_xor_b32 v{TM[2]}, v{TM[2]}, v{TM[1]}")
            e(f"v_lshlrev_b32 v{TM[3]}, 8, v{TM[0]}")
            e(f"v_lshl_add_u32 v{TM[2]}, v{TM[2]}, 4, v{TM[3]}")
            e(f"v_add_u32 v{A[0]}, {sT1}, v{TM[2]}")
            for ks in range(1, 4):
                e(f"v_xor_b32 v{A[ks]}, {ks<<6}, v{A[0]}")
            for ks in range(4):
                e(f"ds_read_b128 {r4(Q(j,ks))}, v{A[ks]}")
        skip = lab("nostore")
        e(f"s_cmp_eq_u32 {sH}, 0")
        e(f"s_cbranch_scc1 {skip}")
        e(f"s_or_b32 {sHIST}, {sHIST}, 1")
        if o.compute:
            allreduce("v_add_f32", [LS[j]], [TM[4]])
            e(f"v_rcp_f32 v{TM[4]}, v{LS[j]}")
            e(f"v_lshrrev_b32 v{TM[2]}, 1, v{TM[1]}")
            e(f"v_xor_b32 v{TM[2]}, v{TM[2]}, v{TM[0]}")
            e(f"v_lshl_add_u32 v{TM[2]}, v{TM[2]}, 4, v{TM[3]}")
            e(f"v_and_b32 v{TM[5]}, 1, v{TM[1]}")
            e(f"v_lshl_add_u32 v{TM[2]}, v{TM[5]}, 3, v{TM[2]}")
            e(f"v_add_u32 v{TM[2]}, {sT1}, v{TM[2]}")
            for T in range(8):
                b = O(T, j)
                for i in range(4):
                    e(f"v_mul_f32 v{b+i}, v{b+i}, v{TM[4]}")
            for T in range(8):
                b = O(T, j)
                e(f"v_cvt_pk_bf16_f32 v{b}, v{b}, v{b+1}")
                e(f"v_cvt_pk_bf16_f32 v{b+1}, v{b+2}, v{b+3}")
            e("s_waitcnt lgkmcnt(0)")
            for T in range(8):
                b = O(T, j)
                a = A[T % 4]
                e(f"v_xor_b32 v{a}, {T<<5}, v{TM[2]}")
                e(f"ds_write_b64 v{a}, {r2(b)}")
            e(f"v_xor_b32 v{TM[2]}, v{TM[0]}, v{TM[1]}")
            e(f"v_lshlrev_b32 v{TM[2]}, 4, v{TM[2]}")
            e(f"v_lshl_add_u32 v{TM[2]}, v{TM[1]}, 8, v{TM[2]}")
            e(f"v_add_u32 v{TM[2]}, {sT1}, v{TM[2]}")
            e("s_waitcnt lgkmcnt(0)")
            for jj in range(4):
                e(f"v_xor_b32 v{A[jj]}, {jj<<6}, v{TM[2]}")
                e(f"ds_read_b128 {r4(F(jj))}, v{A[jj]} offset:{jj*1024}")
            for T in range(8):
                b = O(T, j)
                for i in range(4):
                    e(f"v_mov_b32 v{b+i}, 0")
            e(f"v_mov_b32 v{LS[j]}, 0")
            e(f"v_mov_b32 v{MC[j]}, 0xff800000")
        e(f"v_lshlrev_b32 v{TM[2]}, 4, v{LANE}")
        e(f"v_add_u32 v{TM[2]}, {sW4K}, v{TM[2]}")
        e(f"s_add_u32 {sT0}, {sOO}, {j*SLOT}")
        for jj in range(4):
            if o.compute:
                e(f"s_waitcnt lgkmcnt({3-jj})")
            e(f"buffer_store_dwordx4 {r4(F(jj))}, v{TM[2]}, {SO}, {sT0} offen offset:{jj*1024}{nts}")
        e(f"{skip}:")
    e(f"s_cmp_eq_u32 {sH}, {o.nh}")
    e("s_cbranch_scc1 L_end")
    e(f"s_mov_b32 {sOO}, {sQN}")
    e(f"s_add_u32 {sH}, {sH}, 1")
    e(f"s_add_u32 {sKVN}, {sKVN}, {hstep*131072}")
    e(f"s_add_u32 {sQN}, {sQN}, {hstep*49152}")
    e(f"s_cmp_eq_u32 {sH}, {o.nh}")
    e(f"s_cselect_b32 {sKVN}, {OOB}, {sKVN}")
    e(f"s_cselect_b32 {sQN}, {OOB}, {sQN}")
    e(f"s_mov_b32 {sIT}, 0")

    def dyn_refill(is_v):
        cases = {}
        for it in range(8):
            cases[it] = refill_static(3 + 2 * it + is_v)
        reg = [it for it in range(8) if not cases[it][2]]
        ty0 = cases[reg[0]][0]; delta = cases[reg[0]][1] - reg[0]
        for it in reg:
            assert cases[it][0] == ty0 and cases[it][1] == it + delta
        nreg = len(reg); assert reg == list(range(nreg))
        done = lab("rd")
        spec = [(it, lab("rs")) for it in range(nreg, 8)]
        for it, lb in spec:
            e(f"s_cmp_eq_u32 {sIT}, {it}")
            e(f"s_cbranch_scc1 {lb}")
        kvoff(sKV, delta, True)
        dma(SK if ty0 == "K" else SV, sT0, DK if ty0 == "K" else DV)
        if spec: e(f"s_branch {done}")
        for k, (it, lb) in enumerate(spec):
            e(f"{lb}:")
            ty, x, nxt = cases[it]
            if ty == "Q":
                e(f"s_add_u32 {sT0}, {sQN}, {x*SLOT}"); dma(SQ, sT0, DK)
            elif ty == "K":
                kvoff(sKVN, x); dma(SK, sT0, DK)
            else:
                kvoff(sKVN, x); dma(SV, sT0, DV)
            if k + 1 < len(spec): e(f"s_branch {done}")
        e(f"{done}:")

    e("L_iter:")
    step_head(False)
    if o.compute:
        e(f"v_add_u32 v{A[0]}, {sCUR}, v{KB}")
        for ks in range(1, 4):
            e(f"v_xor_b32 v{A[ks]}, {ks<<6}, v{A[0]}")
        def kread(f):
            kt, ks = f >> 2, f & 3
            off = f" offset:{kt*1024}" if kt else ""
            e(f"ds_read_b128 {r4(F(f))}, v{A[ks]}{off}")
        for f in range(o.kpre): kread(f)
    dyn_refill(0)
    if o.compute:
        for f in range(16):
            kt, ks = f >> 2, f & 3
            issued = min(16, o.kpre + f)
            e(f"s_waitcnt lgkmcnt({issued - f - 1})")
            for qt in range(3):
                c = "0" if ks == 0 else r4(S(kt, qt))
                e(f"v_mfma_f32_16x16x32_bf16 {r4(S(kt,qt))}, {r4(F(f))}, {r4(Q(qt,ks))}, {c}")
            if f + o.kpre < 16: kread(f + o.kpre)
        LM = [TM[0], TM[1], TM[2]]
        vals = [[S(kt, qt) + i for kt in range(4) for i in range(4)] for qt in range(3)]
        for qt in range(3):
            v = vals[qt]
            e(f"v_max3_f32 v{LM[qt]}, v{v[0]}, v{v[1]}, v{v[2]}")
        for k in range(6):
            for qt in range(3):
                v = vals[qt]
                e(f"v_max3_f32 v{LM[qt]}, v{LM[qt]}, v{v[3+2*k]}, v{v[4+2*k]}")
        for qt in range(3):
            e(f"v_max_f32 v{LM[qt]}, v{LM[qt]}, v{vals[qt][15]}")
        for qt in range(3):
            e(f"v_fma_f32 v{TM[3+qt]}, v{LM[qt]}, {sC}, -v{MC[qt]}")
        e(f"v_max3_f32 v{TM[3]}, v{TM[3]}, v{TM[4]}, v{TM[5]}")
        e(f"v_cmp_lt_f32 vcc, {sT}, v{TM[3]}")
        e("s_cbranch_vccnz L_rare")
        e("L_back:")
        for u in range(2):
            for qt in range(3):
                v = [S(2*u, qt) + i for i in range(4)] + [S(2*u+1, qt) + i for i in range(4)]
                for x in v: e(f"v_fma_f32 v{x}, v{x}, {sC}, -v{MC[qt]}")
                for x in v: e(f"v_exp_f32 v{x}, v{x}")
                e("s_nop 0")
                for x in v: e(f"v_add_f32 v{LS[qt]}, v{LS[qt]}, v{x}")
                b = S(2*u, qt)
                for jj in range(4):
                    e(f"v_cvt_pk_bf16_f32 v{b+jj}, v{v[2*jj]}, v{v[2*jj+1]}")
    step_head(False)
    if o.compute:
        e(f"v_add_u32 v{TM[0]}, {sCUR}, v{VB}")
        def vread(f):
            T, u = f >> 1, f & 1
            a = A[T % 4]
            if u == 0:
                e(f"v_xor_b32 v{a}, {T<<5}, v{TM[0]}")
            for ee in range(2):
                off = 2048 * u + 1024 * ee
                offs = f" offset:{off}" if off else ""
                e(f"ds_read_b64_tr_b16 {r2(F(f)+2*ee)}, v{a}{offs}")
        for f in range(o.vpre): vread(f)
    dyn_refill(1)
    if o.compute:
        for f in range(16):
            T, u = f >> 1, f & 1
            issued = min(16, o.vpre + f)
            e(f"s_waitcnt lgkmcnt({2*(issued - f - 1)})")
            for qt in range(3):
                e(f"v_mfma_f32_16x16x32_bf16 {r4(O(T,qt))}, {r4(F(f))}, {r4(S(2*u,qt))}, {r4(O(T,qt))}")
            if f + o.vpre < 16: vread(f + o.vpre)
    e(f"s_add_u32 {sIT}, {sIT}, 1")
    e(f"s_cmp_lt_u32 {sIT}, 8")
    e("s_cbranch_scc1 L_iter")
    e("s_nop 7")
    e("s_branch L_head")

    if o.compute:
        e("L_rare:")
        LM = [TM[0], TM[1], TM[2]]
        allreduce("v_max_f32", LM, [TM[3], TM[4], TM[5]])
        for qt in range(3):
            e(f"v_mul_f32 v{LM[qt]}, {sC}, v{LM[qt]}")
        for qt in range(3):
            e(f"v_max_f32 v{LM[qt]}, v{LM[qt]}, v{MC[qt]}")
        for qt in range(3):
            e(f"v_sub_f32 v{TM[3+qt]}, v{MC[qt]}, v{LM[qt]}")
        for qt in range(3):
            e(f"v_exp_f32 v{TM[3+qt]}, v{TM[3+qt]}")
        for qt in range(3):
            e(f"v_mov_b32 v{MC[qt]}, v{LM[qt]}")
        for qt in range(3):
            e(f"v_mul_f32 v{LS[qt]}, v{LS[qt]}, v{TM[3+qt]}")
        for T in range(8):
            for qt in range(3):
                for i in range(4):
                    e(f"v_mul_f32 v{O(T,qt)+i}, v{O(T,qt)+i}, v{TM[3+qt]}")
        e("s_branch L_back")
    e("L_end:")
    e("s_endpgm")
    L.append('.section .rodata,"a"')
    L.append(".p2align 6")
    L.append(f".amdhsa_kernel {o.name}_kernel")
    L.append(f"  .amdhsa_next_free_vgpr {o.vgpr}")
    L.append("  .amdhsa_next_free_sgpr 48")
    L.append("  .amdhsa_accum_offset 256")
    L.append("  .amdhsa_group_segment_fixed_size 0")
    L.append("  .amdhsa_kernarg_size 48")
    L.append("  .amdhsa_user_sgpr_count 2")
    L.append("  .amdhsa_user_sgpr_kernarg_segment_ptr 1")
    L.append("  .amdhsa_system_sgpr_workgroup_id_x 1")
    L.append(".end_amdhsa_kernel")
    return "\n".join(L) + "\n"

if __name__ == "__main__":
    o = Opt()
    out = sys.argv[1]
    for a in sys.argv[2:]:
        k, v = a.split("=")
        cur = getattr(o, k)
        setattr(o, k, (v in ("1", "True", "true")) if isinstance(cur, bool) else type(cur)(v))
    open(out, "w").write(gen(o))
```

```python
import re, sys

TRANS = ("v_exp_f32", "v_log_f32", "v_rcp_f32", "v_rsq_f32", "v_sqrt_f32", "v_sin_f32", "v_cos_f32")

def regs(op):
    op = op.strip().lstrip("-")
    if op.startswith("|"): op = op.strip("|")
    m = re.fullmatch(r"([vsa])\[(\d+):(\d+)\]", op)
    if m: return {(m.group(1), i) for i in range(int(m.group(2)), int(m.group(3)) + 1)}
    m = re.fullmatch(r"([vsa])(\d+)", op)
    if m: return {(m.group(1), int(m.group(2)))}
    if op == "vcc": return {("s", 106), ("s", 107)}
    if op == "m0": return {("s", 124)}
    if op == "exec": return {("s", 126), ("s", 127)}
    return set()

class I:
    def __init__(s, text, idx):
        s.text = text; s.idx = idx
        t = text.split(";")[0].strip()
        p = t.split(None, 1)
        s.op = p[0]
        rest = p[1] if len(p) > 1 else ""
        ops = [x.strip() for x in rest.split(",")]
        if ops and ops[-1]:
            ops[-1] = ops[-1].split()[0]
        s.ops = ops
        s.w = set(); s.r = set(); s.ra = set(); s.rc = set()
        op = s.op
        s.mfma = op.startswith("v_mfma")
        s.valu = op.startswith("v_") and not s.mfma
        s.trans = op in TRANS
        s.ds = op.startswith("ds_")
        s.vmem = op.startswith("buffer_") or op.startswith("global_")
        s.salu = op.startswith("s_")
        s.states = 1
        if op == "s_nop": s.states = int(ops[0], 0) + 1
        R = [regs(o) for o in ops]
        if s.mfma:
            s.w = R[0]; s.ra = R[1] | R[2]; s.rc = R[3]; s.r = s.ra | s.rc
            s.passes = 8 if "32x32" in op else 4
        elif s.valu:
            if "permlane" in op and "swap" in op:
                s.w = R[0] | R[1]; s.r = R[0] | R[1]
            else:
                s.w = R[0]
                for x in R[1:]: s.r |= x
                if op.startswith("v_fmac") or op.startswith("v_pk_fmac"): s.r |= R[0]
                if op.startswith("v_cndmask") and len(ops) == 3: s.r |= regs("vcc")
        elif s.ds:
            if "read" in op: s.w = R[0]; s.r = R[1]
            else:
                for x in R: s.r |= x
        elif s.vmem:
            lds = " lds" in t
            if "load" in op and not lds:
                s.w = R[0]
                for x in R[1:]: s.r |= x
            else:
                for x in R: s.r |= x
                if lds: s.r |= regs("m0")
            s.lds = lds
        elif s.salu:
            if op.startswith("s_cmp") or op.startswith("s_cbranch") or op in ("s_branch", "s_waitcnt", "s_barrier", "s_nop", "s_setprio", "s_endpgm", "s_sleep"):
                for x in R: s.r |= x
            else:
                s.w = R[0] if R else set()
                for x in R[1:]: s.r |= x

def need(p, c):
    n = 0
    vw = {x for x in p.w if x[0] in "va"}
    sw = {x for x in p.w if x[0] == "s"}
    if p.valu and c.mfma and vw & c.r: n = max(n, 2)
    if p.mfma:
        big = {4: 8, 8: 12}[p.passes]; part = {4: 6, 8: 10}[p.passes]
        if c.mfma:
            if p.w & c.ra: n = max(n, big)
            if p.w & c.rc and not (p.w == c.rc and p.passes == c.passes): n = max(n, part)
            if p.w & c.w and not (p.w == c.rc) and not (p.w == c.w and p.passes == c.passes): n = max(n, part)
        elif c.valu:
            if p.w & (c.r | c.w): n = max(n, big)
            if p.rc & c.w: n = max(n, {4: 3, 8: 7}[p.passes])
        elif c.ds or c.vmem:
            if p.w & (c.r | c.w): n = max(n, big)
    if p.trans and c.valu and not c.trans and vw & c.r: n = max(n, 1)
    if p.trans and (c.mfma) and vw & c.r: n = max(n, 2)
    if p.valu and "permlane" in c.op and vw & c.r: n = max(n, 2)
    if p.valu and c.valu and "dpp" in c.text and vw & c.r: n = max(n, 2)
    if p.vmem and "store" in p.op and ("x4" in p.op or "x3" in p.op):
        data = regs(p.ops[0]) if p.op.startswith("buffer") else regs(p.ops[1])
        if data & c.w: n = max(n, 2)
    if p.salu and ("s", 124) in p.w and c.vmem and getattr(c, "lds", False): n = max(n, 1)
    if p.valu and sw:
        if c.valu and sw & c.r: n = max(n, 2)
        if c.vmem and sw & c.r: n = max(n, 5)
    if p.valu and c.op in ("v_readfirstlane_b32", "v_readlane_b32") and vw & c.r: n = max(n, 1)
    return n

def check(text):
    ins = []; labels = {}
    for ln in text.splitlines():
        t = ln.split(";")[0].strip()
        if not t or t.startswith("."): continue
        if t.endswith(":"):
            labels[t[:-1]] = len(ins); continue
        ins.append(I(t, len(ins)))
    preds = [[] for _ in ins] + [[]]
    for i, x in enumerate(ins):
        if x.op == "s_branch" or x.op.startswith("s_cbranch"):
            preds[labels[x.ops[0]]].append(i)
        if x.op not in ("s_branch", "s_endpgm"):
            preds[i + 1].append(i)
    bad = 0
    for c in ins:
        stack = [(p, 0) for p in preds[c.idx]]
        seen = {}
        while stack:
            pi, d = stack.pop()
            if pi in seen and seen[pi] <= d: continue
            seen[pi] = d
            p = ins[pi]
            n = need(p, c)
            if n > d:
                print(f"HAZARD need {n} have {d}: [{p.idx}] {p.text}  ->  [{c.idx}] {c.text}")
                bad += 1
            nd = d + p.states
            if nd < 13:
                for q in preds[pi]: stack.append((q, nd))
    return bad, len(ins)

if __name__ == "__main__":
    for f in sys.argv[1:]:
        b, n = check(open(f).read())
        print(f"{f}: {n} instructions, {b} hazards")
```

```python
import sys, math, struct

def f2u(x):
    return struct.unpack("<I", struct.pack("<f", x))[0]

class Opt:
    ldpol = "nt"
    stpol = "sc1"
    nh = 2
    nwg = 0
    prio = 0
    lds = 0
    wpair = False
    stamp = False
    phases = False
    nanfill = False
    kpre = 6
    vpre = 6
    kbud = 12
    vbud = 10
    name = "standalone__gqa_softmax__near_ridge"

def cost(s):
    if s.startswith("v_exp") or s.startswith("v_rcp"): return 8
    if s.startswith("buffer_"): return 16
    return 4

def gen(o):
    L = []
    def e(s=""):
        L.append("    " + s if s and not s.endswith(":") else s)
    nwg = o.nwg or 1024 // o.nh
    SLOT = 16384; R = 4; LDS = o.lds or R * SLOT
    ntl = (" " + o.ldpol.replace("_", " ")) if o.ldpol not in ("", "none") else ""
    nts = (" " + o.stpol.replace("_", " ")) if o.stpol not in ("", "none") else ""
    NF = 6
    def O(T, qt): return (T * 3 + qt) * 4
    def LA(qt): return 96 + qt * 4
    def Q(qt, ks): return 108 + (qt * 4 + ks) * 4
    def S(kt, qt): return 156 + (kt * 3 + qt) * 4
    def F(i): return 204 + (i % NF) * 4
    ONES = 228
    MC = [232, 233, 234]
    DK, DV = 235, 236
    KA = [237, 238, 239, 240]
    VA = [241 + i for i in range(8)]
    TM = [249 + i for i in range(7)]
    def r4(b): return f"v[{b}:{b+3}]"
    def r2(b): return f"v[{b}:{b+1}]"
    SQ, SK, SV, SO, SR = "s[4:7]", "s[8:11]", "s[12:15]", "s[16:19]", "s[44:47]"
    sW, sW4K, sK, sV, sIT, sH = "s20", "s21", "s22", "s23", "s24", "s25"
    sKV2, sKVN, sQN, sOO, sC, sP, sSOFF, sT0, sT1, sT2 = "s26", "s27", "s28", "s29", "s30", "s31", "s32", "s33", "s34", "s35"
    sSEL = "s[36:37]"; sM = "s[38:39]"; sQN6 = "s40"; sMASK = "s41"
    OOB = 0x40000000
    NQ, NK = 50331648, 134217728
    uid = [0]
    def lab(p):
        uid[0] += 1
        return f"L_{p}_{uid[0]}"
    tail = []

    L.append(f"; @launch grid=({nwg},1,1) block=(256,1,1) lds={LDS}")
    L.append('.amdgcn_target "amdgcn-amd-amdhsa--gfx950"')
    L.append(".text")
    L.append(f".globl {o.name}_kernel")
    L.append(".p2align 8")
    L.append(f".type {o.name}_kernel,@function")
    L.append(f"{o.name}_kernel:")
    e(f"s_cmp_ge_u32 s2, {nwg}")
    e("s_cbranch_scc1 L_end")
    if o.stamp:
        e("s_memrealtime s[48:49]")
        e("s_memtime s[50:51]")
        e("s_load_dwordx2 s[56:57], s[0:1], 40")
    e("s_load_dwordx4 s[36:39], s[0:1], 0")
    e("s_load_dwordx4 s[40:43], s[0:1], 16")
    e("v_and_b32 v9, 63, v0")
    e("v_lshrrev_b32 v1, 6, v0")
    e("v_and_b32 v2, 15, v9")
    e(f"v_readfirstlane_b32 {sW}, v1")
    e("v_lshrrev_b32 v3, 4, v9")
    e("v_lshrrev_b32 v4, 2, v2")
    e("v_and_b32 v5, 3, v2")
    e(f"s_lshl_b32 {sW4K}, {sW}, 12")
    e(f"s_lshl_b32 {sT0}, {sW}, 2")
    e("v_lshlrev_b32 v6, 8, v3")
    e(f"v_add_u32 v6, {sW4K}, v6")
    e(f"v_add_u32 v7, {sT0}, v3")
    e("v_xor_b32 v7, v7, v2")
    e(f"v_lshl_add_u32 v{DK}, v7, 4, v6")
    e(f"s_and_b32 {sT0}, {sW}, 1")
    e(f"s_lshl_b32 {sT0}, {sT0}, 2")
    e(f"v_add_u32 v7, {sT0}, v3")
    e("v_lshlrev_b32 v7, 1, v7")
    e("v_xor_b32 v7, v7, v2")
    e(f"v_lshl_add_u32 v{DV}, v7, 4, v6")
    e(f"s_mul_i32 {sT0}, s2, {o.nh}")
    e(f"s_lshl_b32 {sKVN}, {sT0}, 17")
    e(f"s_mul_i32 {sQN}, {sT0}, 49152")
    e("s_waitcnt lgkmcnt(0)")
    for (b, p, n) in ((4, 36, NQ), (8, 38, NK), (12, 40, NK), (16, 42, NQ)):
        e(f"s_mov_b32 s{b}, s{p}")
        e(f"s_and_b32 s{b+1}, s{p+1}, 0xffff")
        e(f"s_mov_b32 s{b+2}, {n}")
        e(f"s_mov_b32 s{b+3}, 0x20000")
    def dma1(srd, soff, voff, j):
        off = f" offset:{1024*j}" if j else ""
        return f"buffer_load_dwordx4 v{voff}, {srd}, {soff} offen{off}{ntl} lds"
    def dma(srd, soff, voff):
        for j in range(4): e(dma1(srd, soff, voff, j))
    e(f"s_mov_b32 m0, {sW4K}")
    e(f"s_add_u32 {sT0}, {sQN}, {SLOT}")
    dma(SQ, sQN, DK)
    e(f"s_add_u32 m0, {sW4K}, {2*SLOT}")
    e("s_nop 0")
    dma(SQ, sT0, DK)
    e("v_lshlrev_b32 v6, 12, v4")
    e("v_lshl_add_u32 v6, v5, 8, v6")
    e("v_xor_b32 v7, v3, v2")
    e("v_lshl_add_u32 v6, v7, 4, v6")
    e(f"v_mov_b32 v{KA[0]}, v6")
    for ks in range(1, 4): e(f"v_xor_b32 v{KA[ks]}, {ks<<6}, v{KA[0]}")
    e("v_lshlrev_b32 v6, 12, v3")
    e("v_lshl_add_u32 v6, v4, 8, v6")
    e("v_and_b32 v7, 1, v3")
    e("v_lshl_add_u32 v7, v7, 2, v4")
    e("v_lshlrev_b32 v7, 1, v7")
    e("v_lshrrev_b32 v8, 1, v5")
    e("v_xor_b32 v7, v7, v8")
    e("v_lshl_add_u32 v6, v7, 4, v6")
    e("v_and_b32 v8, 1, v2")
    e("v_lshl_add_u32 v6, v8, 3, v6")
    e(f"v_add_u32 v{VA[0]}, {3*SLOT}, v6")
    for T in range(1, 8): e(f"v_xor_b32 v{VA[T]}, {T<<5}, v{VA[0]}")
    for i in range(4): e(f"v_mov_b32 v{ONES+i}, 0x3f803f80")
    e(f"s_add_u32 {sK}, {sW4K}, {SLOT}")
    e(f"s_add_u32 {sV}, {sW4K}, {3*SLOT}")
    e(f"s_mov_b32 {sC}, {hex(f2u(math.log2(math.e) / math.sqrt(128.0)))}")
    e(f"s_mov_b32 {sMASK}, 0x40004000")
    e(f"s_mov_b32 {sH}, 0")
    e(f"s_mov_b32 {sOO}, {OOB}")
    if o.stamp:
        e("s_mov_b32 s61, 0"); e("s_mov_b32 s62, 0")
    if o.prio == 1: e("s_setprio 3")
    if o.nanfill:
        for i in range(108): e(f"v_mov_b32 v{i}, 0x7fc00000")

    def ph(k):
        if not o.phases: return
        e("s_memtime s[66:67]")
        e("s_waitcnt lgkmcnt(0)")
        e("s_sub_u32 s68, s66, s64")
        e(f"s_add_u32 s{72+k}, s{72+k}, s68")
        e("s_mov_b32 s64, s66")
    if o.phases:
        for k in range(8): e(f"s_mov_b32 s{72+k}, 0")
        e("s_memtime s[64:65]")
        e("s_waitcnt lgkmcnt(0)")

    def nxt(dst, src):
        return [f"s_add_u32 {dst}, {src}, {SLOT}", f"s_cmp_eq_u32 {dst}, {LDS}", f"s_cselect_b32 {dst}, 0, {dst}"]

    def allreduce(op, x, t):
        for a, b in zip(x, t): e(f"v_mov_b32 v{b}, v{a}")
        e("s_nop 1")
        for a, b in zip(x, t): e(f"v_permlane16_swap_b32 v{a}, v{b}")
        for a, b in zip(x, t): e(f"{op} v{a}, v{a}, v{b}")
        for a, b in zip(x, t): e(f"v_mov_b32 v{b}, v{a}")
        e("s_nop 1")
        for a, b in zip(x, t): e(f"v_permlane32_swap_b32 v{a}, v{b}")
        for a, b in zip(x, t): e(f"{op} v{a}, v{a}, v{b}")

    def weave(spine, fillers, bud):
        q = list(fillers); j = -1; credit = 0
        for s in spine:
            e(s)
            if s.startswith("v_mfma"):
                j += 1
                credit += bud
                while q and q[0][0] <= j and credit > 0:
                    _, ins = q.pop(0)
                    for x in (ins if isinstance(ins, list) else [ins]):
                        e(x); credit -= cost(x)
                credit = min(credit, bud)
        for _, ins in q:
            for x in (ins if isinstance(ins, list) else [ins]): e(x)

    e("L_head:")
    e(f"s_add_u32 {sKV2}, {sKVN}, {SLOT}")
    X = [S(0, 0) + i for i in range(16)]
    e(f"v_mbcnt_lo_u32_b32 v{X[8]}, -1, 0")
    e(f"v_mbcnt_hi_u32_b32 v{X[8]}, -1, v{X[8]}")
    e(f"v_and_b32 v{X[0]}, 15, v{X[8]}")
    e(f"v_lshrrev_b32 v{X[1]}, 4, v{X[8]}")
    e(f"v_lshlrev_b32 v{X[3]}, 8, v{X[0]}")
    e(f"s_lshl_b32 {sT0}, {sW}, 2")
    e(f"v_and_b32 v{X[2]}, 3, v{X[0]}")
    e(f"v_add_u32 v{X[2]}, {sT0}, v{X[2]}")
    e(f"v_xor_b32 v{X[2]}, v{X[2]}, v{X[1]}")
    e(f"v_lshl_add_u32 v{X[9]}, v{X[2]}, 4, v{X[3]}")
    e(f"v_lshrrev_b32 v{X[2]}, 1, v{X[1]}")
    e(f"v_xor_b32 v{X[2]}, v{X[2]}, v{X[0]}")
    e(f"v_lshl_add_u32 v{X[2]}, v{X[2]}, 4, v{X[3]}")
    e(f"v_and_b32 v{X[5]}, 1, v{X[1]}")
    e(f"v_lshl_add_u32 v{X[10]}, v{X[5]}, 3, v{X[2]}")
    e(f"v_xor_b32 v{X[2]}, v{X[0]}, v{X[1]}")
    e(f"v_lshlrev_b32 v{X[2]}, 4, v{X[2]}")
    e(f"v_lshl_add_u32 v{X[11]}, v{X[1]}, 8, v{X[2]}")
    e(f"v_lshlrev_b32 v{X[12]}, 4, v{X[8]}")
    e(f"v_add_u32 v{X[12]}, {sW4K}, v{X[12]}")
    AX = [S(2, 0) + i for i in range(8)]
    for j in range(3):
        qpos = [0, 2, 1][j]; fpos = [1, 0, 2][j]
        e(f"s_add_u32 m0, {sW4K}, {fpos*SLOT}")
        e(f"s_add_u32 {sT1}, {sW4K}, {qpos*SLOT}")
        e(f"v_add_u32 v{AX[0]}, {sT1}, v{X[9]}")
        for ks in range(1, 4): e(f"v_xor_b32 v{AX[ks]}, {ks<<6}, v{AX[0]}")
        e(f"v_rcp_f32 v{X[4]}, v{LA(j)}")
        e(f"v_add_u32 v{X[6]}, {sT1}, v{X[10]}")
        e(f"v_add_u32 v{X[7]}, {sT1}, v{X[11]}")
        for T in range(8):
            b = O(T, j)
            for i in range(4): e(f"v_mul_f32 v{b+i}, v{b+i}, v{X[4]}")
        for T in range(8):
            b = O(T, j)
            e(f"v_cvt_pk_bf16_f32 v{b}, v{b}, v{b+1}")
            e(f"v_cvt_pk_bf16_f32 v{b+1}, v{b+2}, v{b+3}")
        e(f"v_mov_b32 v{MC[j]}, 0xff800000")
        e(f"s_waitcnt vmcnt({4 + 4*j}) lgkmcnt(0)")
        e("s_barrier")
        for ks in range(4): e(f"ds_read_b128 {r4(Q(j,ks))}, v{AX[ks]}")
        if j == 0:
            e(f"s_add_u32 {sT0}, {sQN}, {2*SLOT}")
            dma(SQ, sT0, DK)
        elif j == 1: dma(SK, sKVN, DK)
        else: dma(SV, sKVN, DV)
        e("s_waitcnt lgkmcnt(0)")
        for T in range(8):
            a = AX[4 + T % 4]
            e(f"v_xor_b32 v{a}, {T<<5}, v{X[6]}")
            e(f"ds_write_b64 v{a}, {r2(O(T, j))}")
        for jj in range(4): e(f"v_xor_b32 v{AX[jj]}, {jj<<6}, v{X[7]}")
        e(f"s_add_u32 {sT0}, {sOO}, {j*SLOT}")
        e("s_waitcnt lgkmcnt(0)")
        for jj in range(4): e(f"ds_read_b128 {r4(F(jj))}, v{AX[jj]} offset:{jj*1024}")
        for jj in range(4):
            e(f"s_waitcnt lgkmcnt({3-jj})")
            e(f"buffer_store_dwordx4 {r4(F(jj))}, v{X[12]}, {SO}, {sT0} offen offset:{jj*1024}{nts}")
    ph(0)
    e(f"s_cmp_eq_u32 {sH}, {o.nh}")
    e("s_cbranch_scc1 L_fin")
    e(f"s_mov_b32 {sOO}, {sQN}")
    e(f"s_add_u32 {sH}, {sH}, 1")
    e(f"s_add_u32 {sKVN}, {sKVN}, 131072")
    e(f"s_add_u32 {sQN}, {sQN}, 49152")
    e(f"s_cmp_eq_u32 {sH}, {o.nh}")
    e(f"s_cselect_b32 {sKVN}, {OOB}, {sKVN}")
    e(f"s_cselect_b32 {sQN}, {OOB}, {sQN}")
    e(f"s_mov_b32 {sIT}, 0")
    if o.stamp:
        e("s_mov_b32 s61, s62")
        e("s_memrealtime s[62:63]")
        e("s_waitcnt lgkmcnt(0)")
    if o.prio == 1:
        pl = lab("pr")
        e(f"s_cmp_eq_u32 {sH}, 1")
        e(f"s_cbranch_scc1 {pl}")
        e("s_setprio 1")
        e(f"{pl}:")

    def kread(f):
        kt, ks = f >> 2, f & 3
        off = f" offset:{kt*1024}" if kt else ""
        return f"ds_read_b128 {r4(F(f))}, v{KA[ks]}{off}"
    def kspine():
        sp = []
        for f in range(16):
            kt, ks = f >> 2, f & 3
            issued = min(16, o.kpre + f)
            if not o.wpair: sp.append(f"s_waitcnt lgkmcnt({issued - f - 1})")
            elif f % 2 == 0: sp.append(f"s_waitcnt lgkmcnt({issued - f - 2})")
            for qt in range(3):
                c = "0" if ks == 0 else r4(S(kt, qt))
                sp.append(f"v_mfma_f32_16x16x32_bf16 {r4(S(kt,qt))}, {r4(F(f))}, {r4(Q(qt,ks))}, {c}")
            if f + o.kpre < 16: sp.append(kread(f + o.kpre))
        return sp
    def fma(kt, qt): return [f"v_fma_f32 v{S(kt,qt)+i}, v{S(kt,qt)+i}, {sC}, -v{MC[qt]}" for i in range(4)]
    def exp(kt, qt): return [f"v_exp_f32 v{S(kt,qt)+i}, v{S(kt,qt)+i}" for i in range(4)]
    def cvt(kt, qt):
        b = S(kt & ~1, qt) + 2 * (kt & 1); s = S(kt, qt)
        return [f"v_cvt_pk_bf16_f32 v{b}, v{s}, v{s+1}", f"v_cvt_pk_bf16_f32 v{b+1}, v{s+2}, v{s+3}"]

    e(f"s_mov_b32 m0, {sK}")
    e(f"s_xor_b32 {sK}, {sK}, {SLOT}")
    for T in range(8): e(f"v_xor_b32 v{VA[T]}, {SLOT}, v{VA[T]}")
    e("s_waitcnt vmcnt(12) lgkmcnt(0)")
    e("s_barrier")
    ph(1)
    dma(SK, sKV2, DK)
    e("L_safe:")
    for f in range(o.kpre): e(kread(f))
    for s in kspine(): e(s)
    LM = [TM[0], TM[1], TM[2]]
    vals = [[S(kt, qt) + i for kt in range(4) for i in range(4)] for qt in range(3)]
    for qt in range(3):
        v = vals[qt]; e(f"v_max3_f32 v{LM[qt]}, v{v[0]}, v{v[1]}, v{v[2]}")
    for k in range(6):
        for qt in range(3):
            v = vals[qt]; e(f"v_max3_f32 v{LM[qt]}, v{LM[qt]}, v{v[3+2*k]}, v{v[4+2*k]}")
    for qt in range(3): e(f"v_max_f32 v{LM[qt]}, v{LM[qt]}, v{vals[qt][15]}")
    allreduce("v_max_f32", LM, [TM[3], TM[4], TM[5]])
    e(f"v_mov_b32 v{TM[6]}, 0x40e00000")
    for qt in range(3): e(f"v_fma_f32 v{LM[qt]}, v{LM[qt]}, {sC}, v{TM[6]}")
    for qt in range(3): e(f"v_max_f32 v{LM[qt]}, v{LM[qt]}, v{MC[qt]}")
    for qt in range(3): e(f"v_sub_f32 v{TM[3+qt]}, v{MC[qt]}, v{LM[qt]}")
    for qt in range(3): e(f"v_exp_f32 v{TM[3+qt]}, v{TM[3+qt]}")
    for qt in range(3): e(f"v_mov_b32 v{MC[qt]}, v{LM[qt]}")
    for qt in range(3):
        for kt in range(4):
            for s in fma(kt, qt): e(s)
    for qt in range(3):
        for i in range(4): e(f"v_mul_legacy_f32 v{LA(qt)+i}, v{LA(qt)+i}, v{TM[3+qt]}")
    for T in range(8):
        for qt in range(3):
            for i in range(4): e(f"v_mul_legacy_f32 v{O(T,qt)+i}, v{O(T,qt)+i}, v{TM[3+qt]}")
    for qt in range(3):
        for kt in range(2):
            for s in exp(kt, qt): e(s)
    for qt in range(3):
        for kt in range(2):
            for s in cvt(kt, qt): e(s)
    e("s_branch L_vstep")

    e("L_kfast:")
    e(f"s_mov_b32 m0, {sK}")
    e(f"s_xor_b32 {sK}, {sK}, {SLOT}")
    e(f"s_lshl_b32 {sT0}, {sIT}, 14")
    e(f"s_add_u32 {sT0}, {sT0}, {sKV2}")
    e("s_waitcnt vmcnt(4) lgkmcnt(0)")
    e("s_barrier")
    ph(1)
    for f in range(o.kpre): e(kread(f))
    sp_l = lab("kr"); back = lab("kb")
    e(f"s_cmp_eq_u32 {sIT}, 7")
    e(f"s_cbranch_scc1 {sp_l}")
    dma(SK, sT0, DK)
    e(f"{back}:")
    tail.append([f"{sp_l}:"] + [dma1(SQ, sQN, DK, j) for j in range(4)] + [f"s_branch {back}"])
    fl = []
    for T in range(8): fl.append((5 + T, f"v_xor_b32 v{VA[T]}, {SLOT}, v{VA[T]}"))
    M = 5
    def at(kt, qt): return 12 * kt + 9 + qt + M
    def add(pos, lst):
        for s in lst: fl.append((pos, s))
    add(at(0,0), fma(0,0)); add(at(0,1), fma(0,1)); add(0, exp(0,0)); add(at(0,2), fma(0,2)); add(0, exp(0,1)); add(0, cvt(0,0))
    add(0, exp(0,2)); add(0, cvt(0,1))
    add(at(1,0), fma(1,0)); add(0, cvt(0,2)); add(at(1,1), fma(1,1)); add(0, exp(1,0)); add(at(1,2), fma(1,2)); add(0, exp(1,1)); add(0, cvt(1,0))
    add(0, exp(1,2)); add(0, cvt(1,1))
    OR, MX = TM[0], TM[1]
    P0 = [S(0, qt) + i for qt in range(3) for i in range(4)]
    add(0, [f"v_or3_b32 v{OR}, v{P0[0]}, v{P0[1]}, v{P0[2]}", f"v_or3_b32 v{OR}, v{OR}, v{P0[3]}, v{P0[4]}"])
    add(0, cvt(1,2))
    add(0, [f"v_or3_b32 v{OR}, v{OR}, v{P0[5]}, v{P0[6]}", f"v_or3_b32 v{OR}, v{OR}, v{P0[7]}, v{P0[8]}", f"v_or3_b32 v{OR}, v{OR}, v{P0[9]}, v{P0[10]}"])
    add(at(2,0), fma(2,0)); add(0, [f"v_or_b32 v{OR}, v{OR}, v{P0[11]}"]); add(at(2,1), fma(2,1)); add(at(2,2), fma(2,2))
    x2 = [S(2, qt) + i for qt in range(3) for i in range(4)]
    x3 = [S(3, qt) + i for qt in range(3) for i in range(4)]
    add(99, [f"v_and_b32 v{OR}, {sMASK}, v{OR}", f"v_max3_f32 v{MX}, v{x2[0]}, v{x2[1]}, v{x2[2]}"])
    add(99, [f"v_cmp_ne_u32 {sM}, 0, v{OR}"])
    for k in range(4): add(99, [f"v_max3_f32 v{MX}, v{MX}, v{x2[3+2*k]}, v{x2[4+2*k]}"])
    add(99, fma(3,0)); add(99, fma(3,1)); add(99, fma(3,2))
    xs = [x2[11]] + x3
    for k in range(6): add(99, [f"v_max3_f32 v{MX}, v{MX}, v{xs[2*k]}, v{xs[2*k+1]}"])
    add(99, [f"v_max_f32 v{MX}, v{MX}, v{xs[12]}"])
    weave(kspine(), fl, o.kbud)
    e(f"v_cmp_lt_f32 vcc, 1.0, v{MX}")
    e(f"s_or_b64 vcc, vcc, {sM}")
    e("s_cbranch_vccnz L_safe")

    e("L_vstep:")
    ph(2)
    sp_l = lab("vw"); back = lab("vb")
    e(f"s_mov_b32 m0, {sV}")
    e(f"s_xor_b32 {sV}, {sV}, {SLOT}")
    e(f"s_lshl_b32 {sT0}, {sIT}, 14")
    e(f"s_add_u32 {sT0}, {sT0}, {sKV2}")
    e(f"s_cmp_eq_u32 {sIT}, 0")
    e(f"s_cbranch_scc1 {sp_l}")
    e("s_waitcnt vmcnt(4) lgkmcnt(0)")
    e(f"{back}:")
    tail.append([f"{sp_l}:", "s_waitcnt vmcnt(8) lgkmcnt(0)", f"s_branch {back}"])
    e("s_barrier")
    ph(4)
    def vread(f):
        u, T = f >> 3, f & 7
        r = []
        for ee in range(2):
            off = 2048 * u + 1024 * ee
            offs = f" offset:{off}" if off else ""
            r.append(f"ds_read_b64_tr_b16 {r2(F(f)+2*ee)}, v{VA[T]}{offs}")
        return r
    for f in range(o.vpre):
        for s in vread(f): e(s)
    sp_l = lab("vr"); back = lab("vb")
    e(f"s_cmp_eq_u32 {sIT}, 7")
    e(f"s_cbranch_scc1 {sp_l}")
    dma(SV, sT0, DV)
    e(f"{back}:")
    tail.append([f"{sp_l}:", f"s_add_u32 {sT0}, {sQN}, {SLOT}"] + [dma1(SQ, sT0, DK, j) for j in range(4)] + [f"s_branch {back}"])
    sp = []
    def lm(u): return [f"v_mfma_f32_16x16x32_bf16 {r4(LA(qt))}, {r4(ONES)}, {r4(S(2*u,qt))}, {r4(LA(qt))}" for qt in range(3)]
    sp += lm(0)
    for f in range(16):
        u, T = f >> 3, f & 7
        issued = min(16, o.vpre + f)
        if not o.wpair: sp.append(f"s_waitcnt lgkmcnt({2*(issued - f - 1)})")
        elif f % 2 == 0: sp.append(f"s_waitcnt lgkmcnt({2*(issued - f - 2)})")
        for qt in range(3):
            sp.append(f"v_mfma_f32_16x16x32_bf16 {r4(O(T,qt))}, {r4(F(f))}, {r4(S(2*u,qt))}, {r4(O(T,qt))}")
        if f + o.vpre < 16: sp += vread(f + o.vpre)
    sp += lm(1)
    fl = []
    add(0, exp(2,0)); add(0, exp(3,0)); add(0, exp(2,1)); add(0, cvt(2,0)); add(0, exp(3,1)); add(0, cvt(3,0)); add(0, exp(2,2)); add(0, cvt(2,1))
    add(0, exp(3,2)); add(0, cvt(3,1)); add(0, cvt(2,2)); add(0, cvt(3,2))
    B = 27
    for ks in range(4): fl.append((B + ks, f"v_xor_b32 v{KA[ks]}, {SLOT}, v{KA[ks]}"))
    fl.append((B+5, f"s_add_u32 {sIT}, {sIT}, 1"))
    weave(sp, fl, o.vbud)
    ph(5)
    if o.prio == 1:
        pl = lab("pp"); pb = lab("pb"); p2 = lab("pp")
        e(f"s_cmp_eq_u32 {sIT}, 4")
        e(f"s_cbranch_scc1 {pl}")
        e(f"{pb}:")
        tail.append([f"{pl}:", f"s_cmp_eq_u32 {sH}, 1", f"s_cbranch_scc1 {p2}", "s_setprio 0", f"s_branch {pb}", f"{p2}:", "s_setprio 2", f"s_branch {pb}"])
    e(f"s_cmp_lt_u32 {sIT}, 8")
    e("s_cbranch_scc1 L_kfast")
    e("s_nop 7")
    e("s_branch L_head")
    for blk in tail:
        for s in blk: e(s)
    e("L_fin:")
    if o.stamp:
        e("s_waitcnt vmcnt(0)")
        e("s_memrealtime s[52:53]")
        e("s_memtime s[54:55]")
        e("s_getreg_b32 s58, hwreg(HW_REG_XCC_ID)")
        e("s_getreg_b32 s59, hwreg(HW_REG_HW_ID)")
        e("s_waitcnt lgkmcnt(0)")
        e("s_lshl_b32 s60, s2, 2")
        e(f"s_add_u32 s60, s60, {sW}")
        e("s_lshl_b32 s60, s60, 5")
        e("v_mov_b32 v0, s48"); e("v_mov_b32 v1, s50"); e("v_mov_b32 v2, s52"); e("v_mov_b32 v3, s54")
        e("v_mov_b32 v4, s58"); e("v_mov_b32 v5, s59"); e("v_mov_b32 v6, s61"); e("v_mov_b32 v7, s62")
        e("v_mov_b32 v8, s60")
        e("global_store_dwordx4 v8, v[0:3], s[56:57]")
        e("global_store_dwordx4 v8, v[4:7], s[56:57] offset:16")
        if o.phases:
            for k in range(8): e(f"v_mov_b32 v{10+k}, s{72+k}")
            e("v_add_u32 v8, 0x100000, v8")
            e("global_store_dwordx4 v8, v[10:13], s[56:57]")
            e("global_store_dwordx4 v8, v[14:17], s[56:57] offset:16")
    e("L_end:")
    e("s_endpgm")
    L.append('.section .rodata,"a"')
    L.append(".p2align 6")
    L.append(f".amdhsa_kernel {o.name}_kernel")
    L.append("  .amdhsa_next_free_vgpr 256")
    L.append(f"  .amdhsa_next_free_sgpr {96 if o.stamp else 48}")
    L.append("  .amdhsa_accum_offset 256")
    L.append("  .amdhsa_group_segment_fixed_size 0")
    L.append("  .amdhsa_kernarg_size 48")
    L.append("  .amdhsa_user_sgpr_count 2")
    L.append("  .amdhsa_user_sgpr_kernarg_segment_ptr 1")
    L.append("  .amdhsa_system_sgpr_workgroup_id_x 1")
    L.append(".end_amdhsa_kernel")
    return "\n".join(L) + "\n"

if __name__ == "__main__":
    o = Opt()
    out = sys.argv[1]
    for a in sys.argv[2:]:
        k, v = a.split("=")
        cur = getattr(o, k)
        setattr(o, k, (v in ("1", "True", "true")) if isinstance(cur, bool) else type(cur)(v))
    txt = gen(o)
    open(out, "w").write(txt)
    import hazard
    b, n = hazard.check(txt)
    print(f"{out}: {n} instrs, {b} hazards")
```

```python
import sys, math, struct

def f2u(x):
    return struct.unpack("<I", struct.pack("<f", x))[0]

class Opt:
    ldpol = "nt"
    stpol = "sc1"
    nh = 2
    nwg = 0
    prio = 0
    trace = False
    thr = ''
    thrpar = 0
    rot = 0
    hmap = 0
    lead = 0
    role = 'lds'
    pstep = 4
    nodma = False
    nosm = False
    nolds = False
    nomfma = False
    nol = False
    drop = ''
    lds = 0
    wpair = False
    stamp = False
    phases = False
    nanfill = False
    kpre = 6
    vpre = 6
    kbud = 12
    vbud = 10
    name = "standalone__gqa_softmax__near_ridge"

def cost(s):
    if s.startswith("v_exp") or s.startswith("v_rcp"): return 8
    if s.startswith("buffer_"): return 16
    return 4

def gen(o):
    L = []
    def e(s=""):
        L.append("    " + s if s and not s.endswith(":") else s)
    nwg = o.nwg or 1024 // o.nh
    SLOT = 16384; R = 5; LDS = o.lds or R * SLOT
    ntl = (" " + o.ldpol.replace("_", " ")) if o.ldpol not in ("", "none") else ""
    nts = (" " + o.stpol.replace("_", " ")) if o.stpol not in ("", "none") else ""
    NF = 6
    def O(T, qt): return (T * 3 + qt) * 4
    def LA(qt): return 96 + qt * 4
    def Q(qt, ks): return 108 + (qt * 4 + ks) * 4
    def S(kt, qt): return 156 + (kt * 3 + qt) * 4
    def F(i): return 204 + (i % NF) * 4
    ONES = 228
    MC = [232, 233, 234]
    DK, DV = 235, 236
    KA = [237, 238, 239, 240]
    VA = [241 + i for i in range(8)]
    TM = [249 + i for i in range(7)]
    def r4(b): return f"v[{b}:{b+3}]"
    def r2(b): return f"v[{b}:{b+1}]"
    SQ, SK, SV, SO, SR = "s[4:7]", "s[8:11]", "s[12:15]", "s[16:19]", "s[44:47]"
    sW, sW4K, sK, sV, sIT, sH = "s20", "s21", "s22", "s23", "s24", "s25"
    sKV2, sKVN, sQN, sOO, sC, sP, sSOFF, sT0, sT1, sT2 = "s26", "s27", "s28", "s29", "s30", "s31", "s32", "s33", "s34", "s35"
    sSEL = "s[36:37]"; sM = "s[38:39]"; sQN6 = "s40"; sMASK = "s41"
    sR1, sR14 = "s44", "s45"
    OOB = 0x40000000
    NQ, NK = 50331648, 134217728
    uid = [0]
    def lab(p):
        uid[0] += 1
        return f"L_{p}_{uid[0]}"
    tail = []

    L.append(f"; @launch grid=({nwg},1,1) block=(256,1,1) lds={LDS}")
    L.append('.amdgcn_target "amdgcn-amd-amdhsa--gfx950"')
    L.append(".text")
    L.append(f".globl {o.name}_kernel")
    L.append(".p2align 8")
    L.append(f".type {o.name}_kernel,@function")
    L.append(f"{o.name}_kernel:")
    e(f"s_cmp_ge_u32 s2, {nwg}")
    e("s_cbranch_scc1 L_end")
    if o.stamp:
        e("s_memrealtime s[48:49]")
        e("s_memtime s[50:51]")
        e("s_load_dwordx2 s[56:57], s[0:1], 40")
    e("s_load_dwordx4 s[36:39], s[0:1], 0")
    e("s_load_dwordx4 s[40:43], s[0:1], 16")
    e("v_and_b32 v9, 63, v0")
    e("v_lshrrev_b32 v1, 6, v0")
    e("v_and_b32 v2, 15, v9")
    e(f"v_readfirstlane_b32 {sW}, v1")
    e("v_lshrrev_b32 v3, 4, v9")
    e("v_lshrrev_b32 v4, 2, v2")
    e("v_and_b32 v5, 3, v2")
    e(f"s_lshl_b32 {sW4K}, {sW}, 12")
    e(f"s_lshl_b32 {sT0}, {sW}, 2")
    e("v_lshlrev_b32 v6, 8, v3")
    e(f"v_add_u32 v6, {sW4K}, v6")
    e(f"v_add_u32 v7, {sT0}, v3")
    e("v_xor_b32 v7, v7, v2")
    e(f"v_lshl_add_u32 v{DK}, v7, 4, v6")
    e(f"s_and_b32 {sT0}, {sW}, 1")
    e(f"s_lshl_b32 {sT0}, {sT0}, 2")
    e(f"v_add_u32 v7, {sT0}, v3")
    e("v_lshlrev_b32 v7, 1, v7")
    e("v_xor_b32 v7, v7, v2")
    e(f"v_lshl_add_u32 v{DV}, v7, 4, v6")
    e(f"s_mul_i32 {sT0}, s2, {1 if o.hmap else o.nh}")
    e(f"s_lshl_b32 {sKVN}, {sT0}, 17")
    e(f"s_mul_i32 {sQN}, {sT0}, 49152")
    e("s_waitcnt lgkmcnt(0)")
    for (b, p, n) in ((4, 36, NQ), (8, 38, NK), (12, 40, NK), (16, 42, NQ)):
        e(f"s_mov_b32 s{b}, s{p}")
        e(f"s_and_b32 s{b+1}, s{p+1}, 0xffff")
        e(f"s_mov_b32 s{b+2}, {n}")
        e(f"s_mov_b32 s{b+3}, 0x20000")
    if o.rot == 0: e(f"s_mov_b32 {sR1}, 0")
    elif o.rot == 1: e(f"s_and_b32 {sR1}, s2, 7")
    elif o.rot == 2:
        e(f"s_lshr_b32 {sR1}, s2, 3"); e(f"s_and_b32 {sR1}, {sR1}, 7")
    else:
        e(f"s_lshr_b32 {sR1}, s2, 3"); e(f"s_add_u32 {sR1}, {sR1}, s2"); e(f"s_lshr_b32 {sT0}, s2, 6"); e(f"s_add_u32 {sR1}, {sR1}, {sT0}"); e(f"s_and_b32 {sR1}, {sR1}, 7")
    e(f"s_lshl_b32 {sR14}, {sR1}, 14")
    e(f"s_add_u32 {sR1}, {sR1}, 1")
    def tileoff():
        e(f"s_add_u32 {sT0}, {sIT}, {sR1}")
        e(f"s_and_b32 {sT0}, {sT0}, 7")
        e(f"s_lshl_b32 {sT0}, {sT0}, 14")
        e(f"s_add_u32 {sT0}, {sT0}, {sKV2}")
    sLATE = "s46"; sSO = "s47"
    if o.thr:
        e(f"s_getreg_b32 {sLATE}, hwreg(HW_REG_XCC_ID)")
        e(f"s_and_b32 {sLATE}, {sLATE}, 1")
        e(f"s_xor_b32 {sLATE}, {sLATE}, {1 - (o.thrpar & 1)}")
        if o.thrpar == 2: e(f"s_mov_b32 {sLATE}, 1")
    def dma1(srd, soff, voff, j):
        off = f" offset:{1024*j}" if j else ""
        return f"buffer_load_dwordx4 v{voff}, {srd}, {soff} offen{off}{ntl} lds"
    def dma(srd, soff, voff):
        for j in range(4): e(dma1(srd, soff, voff, j))
    e(f"s_mov_b32 m0, {sW4K}")
    e(f"s_add_u32 {sT0}, {sQN}, {SLOT}")
    dma(SQ, sQN, DK)
    e(f"s_add_u32 m0, {sW4K}, {2*SLOT}")
    e("s_nop 0")
    dma(SQ, sT0, DK)
    e(f"s_add_u32 m0, {sW4K}, {SLOT}")
    e(f"s_add_u32 {sT0}, {sQN}, {2*SLOT}")
    dma(SQ, sT0, DK)
    e("v_lshlrev_b32 v6, 12, v4")
    e("v_lshl_add_u32 v6, v5, 8, v6")
    e("v_xor_b32 v7, v3, v2")
    e("v_lshl_add_u32 v6, v7, 4, v6")
    e(f"v_mov_b32 v{KA[0]}, v6")
    for ks in range(1, 4): e(f"v_xor_b32 v{KA[ks]}, {ks<<6}, v{KA[0]}")
    e("v_lshlrev_b32 v6, 12, v3")
    e("v_lshl_add_u32 v6, v4, 8, v6")
    e("v_and_b32 v7, 1, v3")
    e("v_lshl_add_u32 v7, v7, 2, v4")
    e("v_lshlrev_b32 v7, 1, v7")
    e("v_lshrrev_b32 v8, 1, v5")
    e("v_xor_b32 v7, v7, v8")
    e("v_lshl_add_u32 v6, v7, 4, v6")
    e("v_and_b32 v8, 1, v2")
    e("v_lshl_add_u32 v6, v8, 3, v6")
    e(f"v_add_u32 v{VA[0]}, {3*SLOT}, v6")
    for T in range(1, 8): e(f"v_xor_b32 v{VA[T]}, {T<<5}, v{VA[0]}")
    for i in range(4): e(f"v_mov_b32 v{ONES+i}, 0x3f803f80")
    e(f"s_add_u32 {sK}, {sW4K}, {SLOT}")
    e(f"s_add_u32 {sV}, {sW4K}, {3*SLOT}")
    e(f"s_mov_b32 {sC}, {hex(f2u(math.log2(math.e) / math.sqrt(128.0)))}")
    e(f"s_mov_b32 {sMASK}, 0x40004000")
    e(f"s_mov_b32 {sH}, 0")
    e(f"s_mov_b32 {sOO}, {OOB}")
    if o.stamp:
        e("s_mov_b32 s61, 0"); e("s_mov_b32 s62, 0")
    if o.prio == 1: e("s_setprio 3")
    sPL, sTH = "s42", "s43"
    def setprio_ladder(done):
        r = []
        for lv in (3, 2, 1):
            nx = lab("pl")
            r += [f"s_cmp_lg_u32 {sPL}, {lv}", f"s_cbranch_scc1 {nx}", f"s_setprio {lv}", f"s_branch {done}", f"{nx}:"]
        r += ["s_setprio 0", f"s_mov_b32 {sTH}, 1000"]
        return r
    if o.prio == 2:
        if o.role == 'lds':
            e(f"s_getreg_b32 {sT0}, hwreg(HW_REG_LDS_ALLOC, 0, 12)")
        else:
            e(f"s_lshr_b32 {sT0}, s2, 8")
        if o.lead >= 0:
            e(f"s_mov_b32 {sT1}, {o.lead}")
        else:
            e(f"s_lshr_b32 {sT1}, s2, 3")
            e(f"s_mul_i32 {sT1}, {sT1}, 5")
            e(f"s_and_b32 {sT1}, {sT1}, {-o.lead - 1}")
            e(f"s_add_u32 {sT1}, {sT1}, 1")
        e(f"s_cmp_lg_u32 {sT0}, 0")
        e(f"s_cselect_b32 {sT1}, {sT1}, 0")
        assert o.pstep == 4
        e(f"s_lshr_b32 {sPL}, {sT1}, 2")
        e(f"s_sub_u32 {sPL}, 3, {sPL}")
        e(f"s_and_b32 {sTH}, {sT1}, 3")
        e(f"s_sub_u32 {sTH}, 4, {sTH}")
        dn = lab("pd")
        for x in setprio_ladder(dn): e(x)
        e(f"{dn}:")
    if o.nanfill:
        for i in range(108): e(f"v_mov_b32 v{i}, 0x7fc00000")

    def ph(k):
        if not o.phases: return
        e("s_memtime s[66:67]")
        e("s_waitcnt lgkmcnt(0)")
        e("s_sub_u32 s68, s66, s64")
        e(f"s_add_u32 s{72+k}, s{72+k}, s68")
        e("s_mov_b32 s64, s66")
    if o.phases:
        for k in range(8): e(f"s_mov_b32 s{72+k}, 0")
        e("s_memtime s[64:65]")
        e("s_waitcnt lgkmcnt(0)")

    def tr():
        if not o.trace: return
        e("s_memrealtime s[66:67]")
        e("s_memtime s[68:69]")
        e("s_waitcnt lgkmcnt(0)")
        e("s_mov_b32 s71, m0")
        e("s_mov_b32 m0, s70")
        e("s_nop 0")
        e(f"v_writelane_b32 v{TM[6]}, s66, m0")
        e("s_add_u32 m0, s70, 32")
        e("s_nop 0")
        e(f"v_writelane_b32 v{TM[6]}, s68, m0")
        e("s_mov_b32 m0, s71")
        e("s_add_u32 s70, s70, 1")
    if o.trace:
        e("s_mov_b32 s70, 0")
        e(f"v_mov_b32 v{TM[6]}, 0")
    def nxt(dst, src):
        return [f"s_add_u32 {dst}, {src}, {SLOT}", f"s_cmp_eq_u32 {dst}, {LDS}", f"s_cselect_b32 {dst}, 0, {dst}"]

    def allreduce(op, x, t):
        for a, b in zip(x, t): e(f"v_mov_b32 v{b}, v{a}")
        e("s_nop 1")
        for a, b in zip(x, t): e(f"v_permlane16_swap_b32 v{a}, v{b}")
        for a, b in zip(x, t): e(f"{op} v{a}, v{a}, v{b}")
        for a, b in zip(x, t): e(f"v_mov_b32 v{b}, v{a}")
        e("s_nop 1")
        for a, b in zip(x, t): e(f"v_permlane32_swap_b32 v{a}, v{b}")
        for a, b in zip(x, t): e(f"{op} v{a}, v{a}, v{b}")

    def weave(spine, fillers, bud):
        q = list(fillers); j = -1; credit = 0
        if o.nosm: q = [x for x in q if not (isinstance(x[1], str) and x[1].split()[0] in ("v_exp_f32", "v_fma_f32", "v_cvt_pk_bf16_f32", "v_or3_b32", "v_max3_f32"))]
        if o.nolds: spine = [x for x in spine if not x.startswith("ds_") and not x.startswith("s_waitcnt")]
        if o.drop: q = [x for x in q if not (isinstance(x[1], str) and x[1].split()[0] in o.drop.split("+"))]
        for s in spine:
            if not (s.startswith("v_mfma") and (o.nomfma or (o.nol and f"v[{ONES}:" in s))): e(s)
            if s.startswith("v_mfma"):
                j += 1
                credit += bud
                while q and q[0][0] <= j and credit > 0:
                    _, ins = q.pop(0)
                    for x in (ins if isinstance(ins, list) else [ins]):
                        e(x); credit -= cost(x)
                credit = min(credit, bud)
        for _, ins in q:
            for x in (ins if isinstance(ins, list) else [ins]): e(x)

    e("L_head:")
    e(f"s_mov_b32 {sKV2}, {sKVN}")
    e(f"s_add_u32 {sP}, {sKVN}, {sR14}")
    X = [S(0, 0) + i for i in range(16)]
    e(f"v_mbcnt_lo_u32_b32 v{X[8]}, -1, 0")
    e(f"v_mbcnt_hi_u32_b32 v{X[8]}, -1, v{X[8]}")
    e(f"v_and_b32 v{X[0]}, 15, v{X[8]}")
    e(f"v_lshrrev_b32 v{X[1]}, 4, v{X[8]}")
    e(f"v_lshlrev_b32 v{X[3]}, 8, v{X[0]}")
    e(f"s_lshl_b32 {sT0}, {sW}, 2")
    e(f"v_and_b32 v{X[2]}, 3, v{X[0]}")
    e(f"v_add_u32 v{X[2]}, {sT0}, v{X[2]}")
    e(f"v_xor_b32 v{X[2]}, v{X[2]}, v{X[1]}")
    e(f"v_lshl_add_u32 v{X[9]}, v{X[2]}, 4, v{X[3]}")
    e(f"v_lshrrev_b32 v{X[2]}, 1, v{X[1]}")
    e(f"v_xor_b32 v{X[2]}, v{X[2]}, v{X[0]}")
    e(f"v_lshl_add_u32 v{X[2]}, v{X[2]}, 4, v{X[3]}")
    e(f"v_and_b32 v{X[5]}, 1, v{X[1]}")
    e(f"v_lshl_add_u32 v{X[10]}, v{X[5]}, 3, v{X[2]}")
    e(f"v_xor_b32 v{X[2]}, v{X[0]}, v{X[1]}")
    e(f"v_lshlrev_b32 v{X[2]}, 4, v{X[2]}")
    e(f"v_lshl_add_u32 v{X[11]}, v{X[1]}, 8, v{X[2]}")
    e(f"v_lshlrev_b32 v{X[12]}, 4, v{X[8]}")
    e(f"v_add_u32 v{X[12]}, {sW4K}, v{X[12]}")
    AX = [S(2, 0) + i for i in range(12)]
    e(f"s_add_u32 {sT1}, {sW4K}, {4*SLOT}")
    e(f"v_add_u32 v{X[6]}, {sT1}, v{X[10]}")
    e(f"v_add_u32 v{X[7]}, {sT1}, v{X[11]}")
    e(f"v_add_u32 v{X[9]}, {sW4K}, v{X[9]}")
    for ks in range(1, 4): e(f"v_xor_b32 v{AX[ks]}, {ks<<6}, v{X[9]}")
    e(f"s_cmp_eq_u32 {sH}, {o.nh}")
    e("s_cbranch_scc1 L_oproc")
    for j in range(3):
        qpos = [0, 2, 1][j]
        e("s_waitcnt vmcnt(8)")
        for ks in range(4): e(f"ds_read_b128 {r4(Q(j,ks))}, v{X[9] if ks == 0 else AX[ks]} offset:{qpos*SLOT}")
        if j < 2:
            e(f"s_add_u32 m0, {sW4K}, {qpos*SLOT}")
            e("s_waitcnt lgkmcnt(0)")
            dma(SK if j == 0 else SV, sP, DK if j == 0 else DV)
    e("L_oproc:")
    for j in range(3): e(f"v_rcp_f32 v{X[j]}, v{LA(j)}")
    for T in range(8): e(f"v_xor_b32 v{AX[4+T]}, {T<<5}, v{X[6]}")
    for jj in range(4): e(f"v_xor_b32 v{AX[jj]}, {jj<<6}, v{X[7]}")
    RB = [[F(jj) for jj in range(4)], [S(1,1) + 4*jj for jj in range(2)] + [F(4), F(5)], [F(jj) for jj in range(4)]]
    def norm(j):
        for T in range(8):
            b = O(T, j)
            for i in range(4): e(f"v_mul_f32 v{b+i}, v{b+i}, v{X[j]}")
        for T in range(8):
            b = O(T, j)
            e(f"v_cvt_pk_bf16_f32 v{b}, v{b}, v{b+1}")
            e(f"v_cvt_pk_bf16_f32 v{b+1}, v{b+2}, v{b+3}")
        e(f"v_mov_b32 v{MC[j]}, 0xff800000")
    def stage(j):
        for T in range(8): e(f"ds_write_b64 v{AX[4+T]}, {r2(O(T, j))}")
        for jj in range(4): e(f"ds_read_b128 {r4(RB[j][jj])}, v{AX[jj]} offset:{jj*1024}")
    def store(j):
        e(f"s_add_u32 {sT0}, {sOO}, {j*SLOT}")
        for jj in range(4):
            e(f"s_waitcnt lgkmcnt({3-jj})")
            e(f"buffer_store_dwordx4 {r4(RB[j][jj])}, v{X[12]}, {SO}, {sT0} offen offset:{jj*1024}{nts}")
    norm(0); e("s_waitcnt lgkmcnt(0)"); stage(0); norm(1); store(0); stage(1); norm(2); store(1); stage(2); store(2)
    ph(0)
    e(f"s_cmp_eq_u32 {sH}, {o.nh}")
    e("s_cbranch_scc1 L_fin")
    e(f"s_mov_b32 {sOO}, {sQN}")
    e(f"s_add_u32 {sH}, {sH}, 1")
    e(f"s_add_u32 {sKVN}, {sKVN}, {131072 * (nwg if o.hmap else 1)}")
    e(f"s_add_u32 {sQN}, {sQN}, {49152 * (nwg if o.hmap else 1)}")
    e(f"s_cmp_eq_u32 {sH}, {o.nh}")
    e(f"s_cselect_b32 {sKVN}, {OOB}, {sKVN}")
    e(f"s_cselect_b32 {sQN}, {OOB}, {sQN}")
    e(f"s_mov_b32 {sIT}, 0")
    if o.stamp:
        e("s_mov_b32 s61, s62")
        e("s_memrealtime s[62:63]")
        e("s_waitcnt lgkmcnt(0)")
    if o.prio == 1:
        pl = lab("pr")
        e(f"s_cmp_eq_u32 {sH}, 1")
        e(f"s_cbranch_scc1 {pl}")
        e("s_setprio 1")
        e(f"{pl}:")

    def kread(f):
        kt, ks = f >> 2, f & 3
        off = f" offset:{kt*1024}" if kt else ""
        return f"ds_read_b128 {r4(F(f))}, v{KA[ks]}{off}"
    def kspine():
        sp = []
        for f in range(16):
            kt, ks = f >> 2, f & 3
            issued = min(16, o.kpre + f)
            if not o.wpair: sp.append(f"s_waitcnt lgkmcnt({issued - f - 1})")
            elif f % 2 == 0: sp.append(f"s_waitcnt lgkmcnt({issued - f - 2})")
            for qt in range(3):
                c = "0" if ks == 0 else r4(S(kt, qt))
                sp.append(f"v_mfma_f32_16x16x32_bf16 {r4(S(kt,qt))}, {r4(F(f))}, {r4(Q(qt,ks))}, {c}")
            if f + o.kpre < 16: sp.append(kread(f + o.kpre))
        return sp
    def fma(kt, qt): return [f"v_fma_f32 v{S(kt,qt)+i}, v{S(kt,qt)+i}, {sC}, -v{MC[qt]}" for i in range(4)]
    def exp(kt, qt): return [f"v_exp_f32 v{S(kt,qt)+i}, v{S(kt,qt)+i}" for i in range(4)]
    def cvt(kt, qt):
        b = S(kt & ~1, qt) + 2 * (kt & 1); s = S(kt, qt)
        return [f"v_cvt_pk_bf16_f32 v{b}, v{s}, v{s+1}", f"v_cvt_pk_bf16_f32 v{b+1}, v{s+2}, v{s+3}"]

    e(f"s_mov_b32 m0, {sK}")
    e(f"s_xor_b32 {sK}, {sK}, {SLOT}")
    for T in range(8): e(f"v_xor_b32 v{VA[T]}, {SLOT}, v{VA[T]}")
    e("s_waitcnt vmcnt(16) lgkmcnt(0)")
    e("s_barrier")
    tr()
    ph(1)
    tileoff()
    dma(SK, sT0, DK)
    e("L_safe:")
    for f in range(o.kpre): e(kread(f))
    for s in kspine(): e(s)
    LM = [TM[0], TM[1], TM[2]]
    vals = [[S(kt, qt) + i for kt in range(4) for i in range(4)] for qt in range(3)]
    for qt in range(3):
        v = vals[qt]; e(f"v_max3_f32 v{LM[qt]}, v{v[0]}, v{v[1]}, v{v[2]}")
    for k in range(6):
        for qt in range(3):
            v = vals[qt]; e(f"v_max3_f32 v{LM[qt]}, v{LM[qt]}, v{v[3+2*k]}, v{v[4+2*k]}")
    for qt in range(3): e(f"v_max_f32 v{LM[qt]}, v{LM[qt]}, v{vals[qt][15]}")
    allreduce("v_max_f32", LM, [TM[3], TM[4], TM[5]])
    e(f"v_mov_b32 v{TM[5]}, 0x40e00000")
    for qt in range(3): e(f"v_fma_f32 v{LM[qt]}, v{LM[qt]}, {sC}, v{TM[5]}")
    for qt in range(3): e(f"v_max_f32 v{LM[qt]}, v{LM[qt]}, v{MC[qt]}")
    for qt in range(3): e(f"v_sub_f32 v{TM[3+qt]}, v{MC[qt]}, v{LM[qt]}")
    for qt in range(3): e(f"v_exp_f32 v{TM[3+qt]}, v{TM[3+qt]}")
    for qt in range(3): e(f"v_mov_b32 v{MC[qt]}, v{LM[qt]}")
    for qt in range(3):
        for kt in range(4):
            for s in fma(kt, qt): e(s)
    for qt in range(3):
        for i in range(4): e(f"v_mul_legacy_f32 v{LA(qt)+i}, v{LA(qt)+i}, v{TM[3+qt]}")
    for T in range(8):
        for qt in range(3):
            for i in range(4): e(f"v_mul_legacy_f32 v{O(T,qt)+i}, v{O(T,qt)+i}, v{TM[3+qt]}")
    for qt in range(3):
        for kt in range(2):
            for s in exp(kt, qt): e(s)
    for qt in range(3):
        for kt in range(2):
            for s in cvt(kt, qt): e(s)
    e("s_branch L_vstep")

    e("L_kfast:")
    e(f"s_mov_b32 m0, {sK}")
    e(f"s_xor_b32 {sK}, {sK}, {SLOT}")
    tileoff()
    e("s_waitcnt vmcnt(4) lgkmcnt(0)")
    e("s_barrier")
    tr()
    ph(1)
    for f in range(o.kpre): e(kread(f))
    def krefill(late):
        sp_l = lab("kr"); back = lab("kb")
        if "k" in o.thr:
            e(f"s_cmp_lg_u32 {sLATE}, {late}")
            e(f"s_cbranch_scc1 {back}")
        e(f"s_cmp_eq_u32 {sIT}, 7")
        e(f"s_cbranch_scc1 {sp_l}")
        if not o.nodma: dma(SK, sSO, DK)
        e(f"{back}:")
        tail.append([f"{sp_l}:"] + [dma1(SQ, sQN, DK, j) for j in range(4)] + [f"s_branch {back}"])
    e(f"s_mov_b32 {sSO}, {sT0}")
    krefill(0)
    ph(3)
    fl = []
    for T in range(8): fl.append((5 + T, f"v_xor_b32 v{VA[T]}, {SLOT}, v{VA[T]}"))
    M = 5
    def at(kt, qt): return 12 * kt + 9 + qt + M
    def add(pos, lst):
        for s in lst: fl.append((pos, s))
    add(at(0,0), fma(0,0)); add(at(0,1), fma(0,1)); add(0, exp(0,0)); add(at(0,2), fma(0,2)); add(0, exp(0,1)); add(0, cvt(0,0))
    add(0, exp(0,2)); add(0, cvt(0,1))
    add(at(1,0), fma(1,0)); add(0, cvt(0,2)); add(at(1,1), fma(1,1)); add(0, exp(1,0)); add(at(1,2), fma(1,2)); add(0, exp(1,1)); add(0, cvt(1,0))
    add(0, exp(1,2)); add(0, cvt(1,1))
    OR, MX = TM[0], TM[1]
    P0 = [S(0, qt) + i for qt in range(3) for i in range(4)]
    add(0, [f"v_or3_b32 v{OR}, v{P0[0]}, v{P0[1]}, v{P0[2]}", f"v_or3_b32 v{OR}, v{OR}, v{P0[3]}, v{P0[4]}"])
    add(0, cvt(1,2))
    add(0, [f"v_or3_b32 v{OR}, v{OR}, v{P0[5]}, v{P0[6]}", f"v_or3_b32 v{OR}, v{OR}, v{P0[7]}, v{P0[8]}", f"v_or3_b32 v{OR}, v{OR}, v{P0[9]}, v{P0[10]}"])
    add(at(2,0), fma(2,0)); add(0, [f"v_or_b32 v{OR}, v{OR}, v{P0[11]}"]); add(at(2,1), fma(2,1)); add(at(2,2), fma(2,2))
    x2 = [S(2, qt) + i for qt in range(3) for i in range(4)]
    x3 = [S(3, qt) + i for qt in range(3) for i in range(4)]
    add(99, [f"v_and_b32 v{OR}, {sMASK}, v{OR}", f"v_max3_f32 v{MX}, v{x2[0]}, v{x2[1]}, v{x2[2]}"])
    add(99, [f"v_cmp_ne_u32 {sM}, 0, v{OR}"])
    for k in range(4): add(99, [f"v_max3_f32 v{MX}, v{MX}, v{x2[3+2*k]}, v{x2[4+2*k]}"])
    add(99, fma(3,0)); add(99, fma(3,1)); add(99, fma(3,2))
    xs = [x2[11]] + x3
    for k in range(6): add(99, [f"v_max3_f32 v{MX}, v{MX}, v{xs[2*k]}, v{xs[2*k+1]}"])
    add(99, [f"v_max_f32 v{MX}, v{MX}, v{xs[12]}"])
    weave(kspine(), fl, o.kbud)
    if "k" in o.thr: krefill(1)
    e(f"v_cmp_lt_f32 vcc, 1.0, v{MX}")
    e(f"s_or_b64 vcc, vcc, {sM}")
    if not (o.nosm or o.nodma or o.nolds or o.nomfma or o.drop): e("s_cbranch_vccnz L_safe")

    e("L_vstep:")
    ph(2)
    sp_l = lab("vw"); back = lab("vb")
    e(f"s_mov_b32 m0, {sV}")
    e(f"s_xor_b32 {sV}, {sV}, {SLOT}")
    tileoff()
    e(f"s_cmp_eq_u32 {sIT}, 0")
    e(f"s_cbranch_scc1 {sp_l}")
    e("s_waitcnt vmcnt(4) lgkmcnt(0)")
    e(f"{back}:")
    tail.append([f"{sp_l}:", "s_waitcnt vmcnt(16) lgkmcnt(0)", f"s_branch {back}"])
    e("s_barrier")
    tr()
    ph(4)
    def vread(f):
        u, T = f >> 3, f & 7
        r = []
        for ee in range(2):
            off = 2048 * u + 1024 * ee
            offs = f" offset:{off}" if off else ""
            r.append(f"ds_read_b64_tr_b16 {r2(F(f)+2*ee)}, v{VA[T]}{offs}")
        return r
    for f in range(o.vpre):
        for s in vread(f): e(s)
    def vrefill(late, itlast):
        sp_l = lab("vr"); back = lab("vb")
        if "v" in o.thr:
            e(f"s_cmp_lg_u32 {sLATE}, {late}")
            e(f"s_cbranch_scc1 {back}")
        e(f"s_cmp_eq_u32 {sIT}, {itlast}")
        e(f"s_cbranch_scc1 {sp_l}")
        if not o.nodma: dma(SV, sSO, DV)
        e(f"{back}:")
        tail.append([f"{sp_l}:", f"s_add_u32 {sT0}, {sQN}, {SLOT}"] + [dma1(SQ, sT0, DK, j) for j in range(4)]
                + [f"s_add_u32 m0, {sW4K}, {SLOT}", f"s_add_u32 {sT0}, {sQN}, {2*SLOT}"] + [dma1(SQ, sT0, DK, j) for j in range(4)] + [f"s_branch {back}"])
    e(f"s_mov_b32 {sSO}, {sT0}")
    vrefill(0, 7)
    ph(6)
    sp = []
    def lm(u): return [f"v_mfma_f32_16x16x32_bf16 {r4(LA(qt))}, {r4(ONES)}, {r4(S(2*u,qt))}, {r4(LA(qt))}" for qt in range(3)]
    sp += lm(0)
    for f in range(16):
        u, T = f >> 3, f & 7
        issued = min(16, o.vpre + f)
        if not o.wpair: sp.append(f"s_waitcnt lgkmcnt({2*(issued - f - 1)})")
        elif f % 2 == 0: sp.append(f"s_waitcnt lgkmcnt({2*(issued - f - 2)})")
        for qt in range(3):
            sp.append(f"v_mfma_f32_16x16x32_bf16 {r4(O(T,qt))}, {r4(F(f))}, {r4(S(2*u,qt))}, {r4(O(T,qt))}")
        if f + o.vpre < 16: sp += vread(f + o.vpre)
    sp += lm(1)
    fl = []
    add(0, exp(2,0)); add(0, exp(3,0)); add(0, exp(2,1)); add(0, cvt(2,0)); add(0, exp(3,1)); add(0, cvt(3,0)); add(0, exp(2,2)); add(0, cvt(2,1))
    add(0, exp(3,2)); add(0, cvt(3,1)); add(0, cvt(2,2)); add(0, cvt(3,2))
    B = 27
    for ks in range(4): fl.append((B + ks, f"v_xor_b32 v{KA[ks]}, {SLOT}, v{KA[ks]}"))
    fl.append((B+5, f"s_add_u32 {sIT}, {sIT}, 1"))
    weave(sp, fl, o.vbud)
    if "v" in o.thr: vrefill(1, 8)
    ph(5)
    if o.prio == 1:
        pl = lab("pp"); pb = lab("pb"); p2 = lab("pp")
        e(f"s_cmp_eq_u32 {sIT}, 4")
        e(f"s_cbranch_scc1 {pl}")
        e(f"{pb}:")
        tail.append([f"{pl}:", f"s_cmp_eq_u32 {sH}, 1", f"s_cbranch_scc1 {p2}", "s_setprio 0", f"s_branch {pb}", f"{p2}:", "s_setprio 2", f"s_branch {pb}"])
    if o.prio == 2:
        pl = lab("pp"); pb = lab("pb")
        e(f"s_sub_u32 {sTH}, {sTH}, 1")
        e(f"s_cmp_eq_u32 {sTH}, 0")
        e(f"s_cbranch_scc1 {pl}")
        e(f"{pb}:")
        tail.append([f"{pl}:", f"s_sub_u32 {sPL}, {sPL}, 1", f"s_mov_b32 {sTH}, {o.pstep}"] + setprio_ladder(pb) + [f"s_branch {pb}"])
    e(f"s_cmp_lt_u32 {sIT}, 8")
    e("s_cbranch_scc1 L_kfast")
    e("s_nop 7")
    e("s_branch L_head")
    for blk in tail:
        for s in blk: e(s)
    e("L_fin:")
    if o.stamp:
        e("s_waitcnt vmcnt(0)")
        e("s_memrealtime s[52:53]")
        e("s_memtime s[54:55]")
        e("s_getreg_b32 s58, hwreg(HW_REG_XCC_ID)")
        e("s_getreg_b32 s59, hwreg(HW_REG_HW_ID)")
        e("s_waitcnt lgkmcnt(0)")
        e("s_lshl_b32 s60, s2, 2")
        e(f"s_add_u32 s60, s60, {sW}")
        e("s_lshl_b32 s60, s60, 5")
        e("v_mov_b32 v0, s48"); e("v_mov_b32 v1, s50"); e("v_mov_b32 v2, s52"); e("v_mov_b32 v3, s54")
        e("v_mov_b32 v4, s58"); e("v_mov_b32 v5, s59"); e("v_mov_b32 v6, s61"); e("v_mov_b32 v7, s62")
        e("v_mov_b32 v8, s60")
        e("global_store_dwordx4 v8, v[0:3], s[56:57]")
        e("global_store_dwordx4 v8, v[4:7], s[56:57] offset:16")
        if o.trace:
            e("v_mbcnt_lo_u32_b32 v9, -1, 0")
            e("v_mbcnt_hi_u32_b32 v9, -1, v9")
            e("s_lshl_b32 s60, s60, 3")
            e("s_add_u32 s60, s60, 0x200000")
            e("v_lshl_add_u32 v9, v9, 2, s60")
            e(f"global_store_dword v9, v{TM[6]}, s[56:57]")
        if o.phases:
            for k in range(8): e(f"v_mov_b32 v{10+k}, s{72+k}")
            e("v_add_u32 v8, 0x100000, v8")
            e("global_store_dwordx4 v8, v[10:13], s[56:57]")
            e("global_store_dwordx4 v8, v[14:17], s[56:57] offset:16")
    e("L_end:")
    e("s_endpgm")
    L.append('.section .rodata,"a"')
    L.append(".p2align 6")
    L.append(f".amdhsa_kernel {o.name}_kernel")
    L.append("  .amdhsa_next_free_vgpr 256")
    L.append(f"  .amdhsa_next_free_sgpr {96 if o.stamp else 48}")
    L.append("  .amdhsa_accum_offset 256")
    L.append("  .amdhsa_group_segment_fixed_size 0")
    L.append("  .amdhsa_kernarg_size 48")
    L.append("  .amdhsa_user_sgpr_count 2")
    L.append("  .amdhsa_user_sgpr_kernarg_segment_ptr 1")
    L.append("  .amdhsa_system_sgpr_workgroup_id_x 1")
    L.append(".end_amdhsa_kernel")
    return "\n".join(L) + "\n"

if __name__ == "__main__":
    o = Opt()
    out = sys.argv[1]
    for a in sys.argv[2:]:
        k, v = a.split("=")
        cur = getattr(o, k)
        setattr(o, k, (v in ("1", "True", "true")) if isinstance(cur, bool) else type(cur)(v))
    txt = gen(o)
    open(out, "w").write(txt)
    import hazard
    b, n = hazard.check(txt)
    print(f"{out}: {n} instrs, {b} hazards")
```

```python
import sys, math, struct
import hazard

def f2u(x):
    return struct.unpack("<I", struct.pack("<f", x))[0]

class Opt:
    ldpol = "nt"
    stpol = "sc1"
    nh = 2
    nwg = 0
    prio = 1
    stamp = False
    trace = False
    nanfill = False
    wpair = False
    kbud = 8
    vbud = 9
    maxnop = 1
    nf = 4
    early = True
    ladd = False
    xhold = 99
    nodma = False
    name = "standalone__gqa_softmax__near_ridge"

def cost(s):
    if s.startswith("v_exp") or s.startswith("v_rcp"): return 8
    return 4

def gen(o):
    L = []
    def e(s=""):
        L.append("    " + s if s and not s.endswith(":") else s)
    nwg = o.nwg or 1024 // o.nh
    SLOT = 16384; LDS = 5 * SLOT
    ntl = (" " + o.ldpol.replace("_", " ")) if o.ldpol not in ("", "none") else ""
    nts = (" " + o.stpol.replace("_", " ")) if o.stpol not in ("", "none") else ""
    NF = o.nf
    def O(T, qt): return (T * 3 + qt) * 4
    def LA(qt): return 96 + qt * 4
    def Q(qt, ks): return 108 + (qt * 4 + ks) * 4
    def S(kt, qt): return 156 + (kt * 3 + qt) * 4
    ONES = 204
    def CI(qt): return 208 + qt * 4
    def F(i): return 220 + (i % NF) * 4
    b0 = 220 + NF * 4
    DK, DV = b0, b0 + 1
    KA = [b0 + 2 + i for i in range(4)]
    VA = [b0 + 6 + i for i in range(8)]
    TM = [b0 + 14 + i for i in range(3)]
    assert TM[-1] < 256
    def r4(b): return f"v[{b}:{b+3}]"
    def r2(b): return f"v[{b}:{b+1}]"
    SQ, SK, SV, SO = "s[4:7]", "s[8:11]", "s[12:15]", "s[16:19]"
    sW, sW4K, sK, sV, sIT, sH = "s20", "s21", "s22", "s23", "s24", "s25"
    sKV, sKVN, sQN, sOO, sC, sT0, sT1 = "s26", "s27", "s28", "s29", "s30", "s33", "s34"
    sM = "s[38:39]"; sMASK = "s41"; sFIRST = "s42"
    OOB = 0x40000000
    NQ, NK = 50331648, 134217728
    MF = "v_mfma_f32_16x16x32_bf16"
    uid = [0]
    def lab(p):
        uid[0] += 1
        return f"L_{p}_{uid[0]}"
    tail = []

    L.append(f"; @launch grid=({nwg},1,1) block=(256,1,1) lds={LDS}")
    L.append('.amdgcn_target "amdgcn-amd-amdhsa--gfx950"')
    L.append(".text")
    L.append(f".globl {o.name}_kernel")
    L.append(".p2align 8")
    L.append(f".type {o.name}_kernel,@function")
    L.append(f"{o.name}_kernel:")
    e(f"s_cmp_ge_u32 s2, {nwg}")
    e("s_cbranch_scc1 L_end")
    if o.stamp:
        e("s_memrealtime s[48:49]")
        e("s_memtime s[50:51]")
        e("s_load_dwordx2 s[56:57], s[0:1], 40")
    e("s_load_dwordx4 s[36:39], s[0:1], 0")
    e("s_load_dwordx4 s[40:43], s[0:1], 16")
    e("v_and_b32 v9, 63, v0")
    e("v_lshrrev_b32 v1, 6, v0")
    e("v_and_b32 v2, 15, v9")
    e(f"v_readfirstlane_b32 {sW}, v1")
    e("v_lshrrev_b32 v3, 4, v9")
    e("v_lshrrev_b32 v4, 2, v2")
    e("v_and_b32 v5, 3, v2")
    e(f"s_lshl_b32 {sW4K}, {sW}, 12")
    e(f"s_lshl_b32 {sT0}, {sW}, 2")
    e("v_lshlrev_b32 v6, 8, v3")
    e(f"v_add_u32 v6, {sW4K}, v6")
    e(f"v_add_u32 v7, {sT0}, v3")
    e("v_xor_b32 v7, v7, v2")
    e(f"v_lshl_add_u32 v{DK}, v7, 4, v6")
    e(f"s_mul_i32 {sT0}, s2, {o.nh}")
    e(f"s_lshl_b32 {sKVN}, {sT0}, 17")
    e(f"s_mul_i32 {sQN}, {sT0}, 49152")
    e(f"s_mov_b32 m0, {sW4K}")
    e(f"s_add_u32 {sT0}, {sQN}, {SLOT}")
    e(f"s_add_u32 {sT1}, {sQN}, {2*SLOT}")
    e("s_mov_b32 s6, " + str(NQ))
    e("s_mov_b32 s7, 0x20000")
    e("s_waitcnt lgkmcnt(0)")
    e("s_mov_b32 s4, s36")
    e("s_and_b32 s5, s37, 0xffff")
    def dma1(srd, soff, voff, j):
        off = f" offset:{1024*j}" if j else ""
        return f"buffer_load_dwordx4 v{voff}, {srd}, {soff} offen{off}{ntl} lds"
    def dma(srd, soff, voff):
        for j in range(4): e(dma1(srd, soff, voff, j))
    dma(SQ, sQN, DK)
    e(f"s_add_u32 m0, {sW4K}, {2*SLOT}")
    e("s_mov_b32 s8, s38")
    dma(SQ, sT0, DK)
    e(f"s_add_u32 m0, {sW4K}, {4*SLOT}")
    e("s_and_b32 s9, s39, 0xffff")
    dma(SQ, sT1, DK)
    e(f"s_mov_b32 s10, {NK}"); e("s_mov_b32 s11, 0x20000")
    for (b, p, n) in ((12, 40, NK), (16, 42, NQ)):
        e(f"s_mov_b32 s{b}, s{p}")
        e(f"s_and_b32 s{b+1}, s{p+1}, 0xffff")
        e(f"s_mov_b32 s{b+2}, {n}")
        e(f"s_mov_b32 s{b+3}, 0x20000")
    e(f"s_and_b32 {sT0}, {sW}, 1")
    e(f"s_lshl_b32 {sT0}, {sT0}, 2")
    e(f"v_add_u32 v7, {sT0}, v3")
    e("v_lshlrev_b32 v7, 1, v7")
    e("v_xor_b32 v7, v7, v2")
    e(f"v_lshl_add_u32 v{DV}, v7, 4, v6")
    e("v_lshlrev_b32 v6, 12, v4")
    e("v_lshl_add_u32 v6, v5, 8, v6")
    e("v_xor_b32 v7, v3, v2")
    e(f"v_lshl_add_u32 v{KA[0]}, v7, 4, v6")
    for ks in range(1, 4): e(f"v_xor_b32 v{KA[ks]}, {ks<<6}, v{KA[0]}")
    e("v_lshlrev_b32 v6, 12, v3")
    e("v_lshl_add_u32 v6, v4, 8, v6")
    e("v_and_b32 v7, 1, v3")
    e("v_lshl_add_u32 v7, v7, 2, v4")
    e("v_lshlrev_b32 v7, 1, v7")
    e("v_lshrrev_b32 v8, 1, v5")
    e("v_xor_b32 v7, v7, v8")
    e("v_lshl_add_u32 v6, v7, 4, v6")
    e("v_and_b32 v8, 1, v2")
    e("v_lshl_add_u32 v6, v8, 3, v6")
    e(f"v_add_u32 v{VA[0]}, {3*SLOT}, v6")
    for T in range(1, 8): e(f"v_xor_b32 v{VA[T]}, {T<<5}, v{VA[0]}")
    for i in range(4): e(f"v_mov_b32 v{ONES+i}, 0x3f803f80")
    e(f"s_add_u32 {sK}, {sW4K}, {SLOT}")
    e(f"s_add_u32 {sV}, {sW4K}, {3*SLOT}")
    e(f"s_mov_b32 {sC}, {hex(f2u(math.log2(math.e) / math.sqrt(128.0)))}")
    e(f"s_mov_b32 {sMASK}, 0x40004000")
    e(f"s_mov_b32 {sH}, 0")
    e(f"s_mov_b32 {sOO}, {OOB}")
    if o.stamp:
        e("s_mov_b32 s61, 0"); e("s_mov_b32 s62, 0")
    if o.prio == 1: e("s_setprio 3")
    if o.nanfill:
        for i in range(108): e(f"v_mov_b32 v{i}, 0x7fc00000")
    def tr():
        if not o.trace: return []
        return ["s_memrealtime s[66:67]", "s_memtime s[68:69]", "s_waitcnt lgkmcnt(0)", "s_mov_b32 s71, m0", "s_mov_b32 m0, s70", "s_nop 0",
                f"v_writelane_b32 v{TM[2]}, s66, m0", "s_add_u32 m0, s70, 32", "s_nop 0", f"v_writelane_b32 v{TM[2]}, s68, m0", "s_mov_b32 m0, s71", "s_add_u32 s70, s70, 1"]
    if o.trace:
        e("s_mov_b32 s70, 0")
        e(f"v_mov_b32 v{TM[2]}, 0")

    def allreduce(op, x, t):
        for a, b in zip(x, t): e(f"v_mov_b32 v{b}, v{a}")
        e("s_nop 1")
        for a, b in zip(x, t): e(f"v_permlane16_swap_b32 v{a}, v{b}")
        for a, b in zip(x, t): e(f"{op} v{a}, v{a}, v{b}")
        for a, b in zip(x, t): e(f"v_mov_b32 v{b}, v{a}")
        e("s_nop 1")
        for a, b in zip(x, t): e(f"v_permlane32_swap_b32 v{a}, v{b}")
        for a, b in zip(x, t): e(f"{op} v{a}, v{a}, v{b}")

    class LQ:
        def __init__(s, pre=()): s.q = list(pre)
        def read(s, tag): s.q.append(tag); assert len(s.q) <= 15, s.q
        def wait(s, tag):
            if tag not in s.q: return None
            i = len(s.q) - 1 - s.q[::-1].index(tag)
            n = len(s.q) - 1 - i
            s.q = s.q[i + 1:]
            return f"s_waitcnt lgkmcnt({n})"
    def short(text):
        c = hazard.I(text, 0); d = 0; miss = 0
        for ln in reversed(L):
            t = ln.strip()
            if t.endswith(":"): continue
            if t.startswith("s_branch") or t.startswith("s_endpgm") or d >= 13: break
            p = hazard.I(t, 0)
            miss = max(miss, hazard.need(p, c) - d)
            d += p.states
        return miss
    def safe_e(x):
        m = short(x)
        if m > 0: e(f"s_nop {m-1}")
        e(x)
    def weave(spine, fillers, bud, lq):
        q = list(fillers); j = -1; credit = 0
        for s in spine:
            if s[0] == "r": lq.read(s[1]); e(s[2]); continue
            if s[0] == "x":
                for x in s[1]: e(x)
                if o.trace and any("lgkmcnt(0)" in x for x in s[1]): lq.q = []
                continue
            if s[0] == "w":
                w = lq.wait(s[1])
                if w: e(w)
                continue
            dl = [i for i, x in enumerate(q) if x[1] == "DEADLINE" and x[0] <= j + 1]
            if dl:
                for _, ins in q[:dl[-1] + 1]:
                    if ins == "DEADLINE": continue
                    for x in (ins if isinstance(ins, list) else [ins]): safe_e(x)
                q = q[dl[-1] + 1:]
            safe_e(s[1])
            j += 1
            credit += bud
            while q and (q[0][0] <= j or q[0][1] == "DEADLINE") and credit > 0:
                if q[0][1] == "DEADLINE": q.pop(0); continue
                ins = q[0][1] if isinstance(q[0][1], list) else [q[0][1]]
                if short(ins[0]) > o.maxnop: break
                q.pop(0)
                for x in ins:
                    safe_e(x); credit -= cost(x)
            credit = min(credit, bud)
        for _, ins in q:
            if ins == "DEADLINE": continue
            for x in (ins if isinstance(ins, list) else [ins]): safe_e(x)

    def kread(f):
        kt, ks = f >> 2, f & 3
        off = f" offset:{kt*1024}" if kt else ""
        return [("r", f"K{f}", f"ds_read_b128 {r4(F(f))}, v{KA[ks]}{off}")]
    def vread(f):
        u, T = f >> 3, f & 7
        r = []
        for ee in range(2):
            off = 2048 * u + 1024 * ee
            offs = f" offset:{off}" if off else ""
            r.append(("r", f"V{f}", f"ds_read_b64_tr_b16 {r2(F(f)+2*ee)}, v{VA[T]}{offs}"))
        return r
    KTAGS = [f"K{f}" for f in range(NF)]
    VTAGS = [f"V{f}" for f in range(NF) for _ in range(2)]
    def emit_reads(lst):
        for x in lst: e(x[2])
    def phase(n, group, own, nxt, sync):
        sp = []
        for f in range(16):
            if not o.wpair: sp.append(("w", f"{n}{f}"))
            elif f % 2 == 0: sp.append(("w", f"{n}{f+1}"))
            sp += group(f)
            if f + NF < 16: sp += own(f + NF)
            if nxt and o.early:
                if f == 12: sp.append(("x", sync))
                if f >= 12: sp += nxt(f - 12)
                if f == 15:
                    for j in range(4, NF): sp += nxt(j)
        return sp
    def kgroup_(init):
        def g(f):
            kt, ks = f >> 2, f & 3
            return [("m", f"{MF} {r4(S(kt,qt))}, {r4(F(f))}, {r4(Q(qt,ks))}, {(r4(CI(qt)) if init else '0') if ks == 0 else r4(S(kt, qt))}") for qt in range(3)]
        return g
    kgroup = kgroup_(False); kgroup_i = kgroup_(True)
    def vgroup(zero):
        def g(f):
            u, T = f >> 3, f & 7
            return [("m", f"{MF} {r4(O(T,qt))}, {r4(F(f))}, {r4(S(2*u,qt))}, {'0' if zero and u == 0 else r4(O(T,qt))}") for qt in range(3)]
        return g
    def fma(kt, qt): return [f"v_add_f32 v{S(kt,qt)+i}, v{S(kt,qt)+i}, v{CI(qt)}" for i in range(4)]
    def exp(kt, qt): return [f"v_exp_f32 v{S(kt,qt)+i}, v{S(kt,qt)+i}" for i in range(4)]
    def cvt(kt, qt):
        b = S(kt & ~1, qt) + 2 * (kt & 1); s = S(kt, qt)
        return [f"v_cvt_pk_bf16_f32 v{b}, v{s}, v{s+1}", f"v_cvt_pk_bf16_f32 v{b+1}, v{s+2}, v{s+3}"]
    def lsum0(kt, qt):
        b = S(kt, qt); t = LA(qt) + 1
        if not o.ladd: return []
        if kt == 0: return [f"v_add_f32 v{t}, v{b}, v{b+1}", f"v_add_f32 v{t}, v{t}, v{b+2}", f"v_add_f32 v{t}, v{t}, v{b+3}"]
        return [f"v_add_f32 v{t}, v{t}, v{b+i}" for i in range(4)]
    def lsum1(kt, qt):
        b = S(kt, qt); t = LA(qt) + (kt & 1)
        return [f"v_add_f32 v{t}, v{t}, v{b+i}" for i in range(4)] if o.ladd else []
    def vsync(vm):
        sp_l = lab("vr"); back = lab("vb")
        r = [f"s_mov_b32 m0, {sV}", f"s_xor_b32 {sV}, {sV}, {SLOT}", f"s_lshl_b32 {sT0}, {sIT}, 14", f"s_add_u32 {sT0}, {sT0}, {sKV}",
             f"s_cmp_eq_u32 {sIT}, 7", f"s_waitcnt vmcnt({vm})", "s_barrier"] + ([] if o.early else [x[2] for f in range(NF) for x in vread(f)]) + tr() + ([f"s_cmp_eq_u32 {sIT}, 7"] if o.trace else []) + [f"s_cbranch_scc1 {sp_l}"]
        if not o.nodma: r += [dma1(SV, sT0, DV, j) for j in range(4)]
        r += [f"{back}:"]
        tail.append([f"{sp_l}:", f"s_add_u32 {sT0}, {sQN}, {SLOT}"] + [dma1(SQ, sT0, DK, j) for j in range(4)]
                    + [f"s_add_u32 m0, {sW4K}, {4*SLOT}", f"s_add_u32 {sT0}, {sQN}, {2*SLOT}"] + [dma1(SQ, sT0, DK, j) for j in range(4)] + [f"s_branch {back}"])
        return r
    def ksync():
        sp_l = lab("kr"); back = lab("kb")
        r = [f"s_cmp_eq_u32 {sIT}, 8", f"s_cbranch_scc1 {back}",
             f"s_mov_b32 m0, {sK}", f"s_xor_b32 {sK}, {sK}, {SLOT}", f"s_lshl_b32 {sT0}, {sIT}, 14", f"s_add_u32 {sT0}, {sT0}, {sKV}",
             f"s_cmp_eq_u32 {sIT}, 7", "s_waitcnt vmcnt(4)", "s_barrier"] + ([] if o.early else [x[2] for f in range(NF) for x in kread(f)]) + tr() + ([f"s_cmp_eq_u32 {sIT}, 7"] if o.trace else []) + [f"s_cbranch_scc1 {sp_l}"]
        if not o.nodma: r += [dma1(SK, sT0, DK, j) for j in range(4)]
        r += [f"{back}:"]
        if o.trace: r += ["s_waitcnt lgkmcnt(0)"]
        tail.append([f"{sp_l}:"] + [dma1(SQ, sQN, DK, j) for j in range(4)] + [f"s_branch {back}"])
        return r

    e("L_head:")
    X = [S(0, 0) + i for i in range(16)]
    AX = [S(2, 0) + i for i in range(12)]
    e(f"v_mbcnt_lo_u32_b32 v{X[8]}, -1, 0")
    e(f"v_mbcnt_hi_u32_b32 v{X[8]}, -1, v{X[8]}")
    e(f"v_and_b32 v{X[0]}, 15, v{X[8]}")
    e(f"v_lshrrev_b32 v{X[1]}, 4, v{X[8]}")
    e(f"v_lshlrev_b32 v{X[3]}, 8, v{X[0]}")
    e(f"s_lshl_b32 {sT0}, {sW}, 2")
    e(f"v_and_b32 v{X[2]}, 3, v{X[0]}")
    e(f"v_add_u32 v{X[2]}, {sT0}, v{X[2]}")
    e(f"v_xor_b32 v{X[2]}, v{X[2]}, v{X[1]}")
    e(f"v_lshl_add_u32 v{X[9]}, v{X[2]}, 4, v{X[3]}")
    e(f"v_add_u32 v{X[9]}, {sW4K}, v{X[9]}")
    for ks in range(1, 4): e(f"v_xor_b32 v{AX[ks]}, {ks<<6}, v{X[9]}")
    e(f"s_cmp_eq_u32 {sH}, {o.nh}")
    e("s_cbranch_scc1 L_last")
    tail.append(["L_last:", "s_waitcnt vmcnt(0)", "s_branch L_oproc"])
    for j in range(3):
        qpos = [0, 2, 4][j]
        if j == 2:
            for a in [X[9]] + AX[1:4]: e(f"v_add_u32 v{a}, {4*SLOT}, v{a}")
        e("s_waitcnt vmcnt(8)")
        for ks in range(4): e(f"ds_read_b128 {r4(Q(j,ks))}, v{X[9] if ks == 0 else AX[ks]} offset:{(qpos & 3)*SLOT}")
        if j < 2:
            e(f"s_add_u32 m0, {sW4K}, {qpos*SLOT}")
            e("s_waitcnt lgkmcnt(0)")
            dma(SK if j == 0 else SV, sKVN, DK if j == 0 else DV)
        else: e("s_waitcnt lgkmcnt(0)")
        for r in range(16):
            q = Q(j, 0) + r; t0 = CI(0) + 2 * (r % 3); t1 = t0 + 1
            e(f"v_lshlrev_b32 v{t0}, 16, v{q}")
            e(f"v_and_b32 v{t1}, 0xffff0000, v{q}")
            e(f"v_mul_f32 v{t0}, {sC}, v{t0}")
            e(f"v_mul_f32 v{t1}, {sC}, v{t1}")
            e(f"v_cvt_pk_bf16_f32 v{q}, v{t0}, v{t1}")
    e("L_oproc:")
    if o.ladd: allreduce("v_add_f32", [LA(j) for j in range(3)], [LA(j) + 1 for j in range(3)])
    for j in range(3): e(f"v_rcp_f32 v{X[13+j]}, v{LA(j)}")
    e(f"s_add_u32 {sT1}, {sW4K}, {4*SLOT}")
    e(f"v_lshrrev_b32 v{X[2]}, 1, v{X[1]}")
    e(f"v_xor_b32 v{X[2]}, v{X[2]}, v{X[0]}")
    e(f"v_lshl_add_u32 v{X[2]}, v{X[2]}, 4, v{X[3]}")
    e(f"v_and_b32 v{X[5]}, 1, v{X[1]}")
    e(f"v_lshl_add_u32 v{X[6]}, v{X[5]}, 3, v{X[2]}")
    e(f"v_add_u32 v{AX[4]}, {sT1}, v{X[6]}")
    for T in range(1, 8): e(f"v_xor_b32 v{AX[4+T]}, {T<<5}, v{AX[4]}")
    e(f"v_xor_b32 v{X[2]}, v{X[0]}, v{X[1]}")
    e(f"v_lshlrev_b32 v{X[2]}, 4, v{X[2]}")
    e(f"v_lshl_add_u32 v{X[7]}, v{X[1]}, 8, v{X[2]}")
    e(f"v_add_u32 v{AX[0]}, {sT1}, v{X[7]}")
    for jj in range(1, 4): e(f"v_xor_b32 v{AX[jj]}, {jj<<6}, v{AX[0]}")
    e(f"v_lshlrev_b32 v{X[12]}, 4, v{X[8]}")
    e(f"v_add_u32 v{X[12]}, {sW4K}, v{X[12]}")
    RB = [[F(jj) for jj in range(4)], [S(1,1), S(1,2), S(3,0), S(3,1)], [F(jj) for jj in range(4)]]
    def norm(j):
        for T in range(8):
            b = O(T, j)
            for i in range(4): e(f"v_mul_f32 v{b+i}, v{b+i}, v{X[13+j]}")
        for T in range(8):
            b = O(T, j)
            e(f"v_cvt_pk_bf16_f32 v{b}, v{b}, v{b+1}")
            e(f"v_cvt_pk_bf16_f32 v{b+1}, v{b+2}, v{b+3}")
    def stage(j):
        for T in range(8): e(f"ds_write_b64 v{AX[4+T]}, {r2(O(T, j))}")
        for jj in range(4): e(f"ds_read_b128 {r4(RB[j][jj])}, v{AX[jj]} offset:{jj*1024}")
    def store(j):
        e(f"s_add_u32 {sT0}, {sOO}, {j*SLOT}")
        for jj in range(4):
            e(f"s_waitcnt lgkmcnt({3-jj})")
            e(f"buffer_store_dwordx4 {r4(RB[j][jj])}, v{X[12]}, {SO}, {sT0} offen offset:{jj*1024}{nts}")
    norm(0); e("s_waitcnt lgkmcnt(0)"); stage(0); norm(1); store(0); stage(1); norm(2); store(1); stage(2); store(2)
    e(f"s_cmp_eq_u32 {sH}, {o.nh}")
    e("s_cbranch_scc1 L_fin")
    e(f"s_mov_b32 {sOO}, {sQN}")
    e(f"s_add_u32 {sKV}, {sKVN}, {SLOT}")
    e(f"s_add_u32 {sH}, {sH}, 1")
    e(f"s_add_u32 {sKVN}, {sKVN}, 131072")
    e(f"s_add_u32 {sQN}, {sQN}, 49152")
    e(f"s_cmp_eq_u32 {sH}, {o.nh}")
    e(f"s_cselect_b32 {sKVN}, {OOB}, {sKVN}")
    e(f"s_cselect_b32 {sQN}, {OOB}, {sQN}")
    e(f"s_mov_b32 {sIT}, 0")
    if o.stamp:
        e("s_mov_b32 s61, s62")
        e("s_memrealtime s[62:63]")
        e("s_waitcnt lgkmcnt(0)")
    if o.prio == 1:
        pl = lab("pr")
        e(f"s_cmp_eq_u32 {sH}, 1")
        e(f"s_cbranch_scc1 {pl}")
        e("s_setprio 1")
        e(f"{pl}:")

    e(f"s_mov_b32 m0, {sK}")
    e(f"s_xor_b32 {sK}, {sK}, {SLOT}")
    for T in range(8): e(f"v_xor_b32 v{VA[T]}, {SLOT}, v{VA[T]}")
    e("s_waitcnt vmcnt(16)")
    e("s_barrier")
    for x in tr(): e(x)
    for f in range(NF): emit_reads(kread(f))
    dma(SK, sKV, DK)
    LM = [CI(qt) + 1 for qt in range(3)]; T1 = [CI(qt) + 2 for qt in range(3)]
    vals = [[S(kt, qt) + i for kt in range(4) for i in range(4)] for qt in range(3)]
    def rowmax():
        for qt in range(3):
            v = vals[qt]; safe_e(f"v_max3_f32 v{LM[qt]}, v{v[0]}, v{v[1]}, v{v[2]}")
        for k in range(6):
            for qt in range(3):
                v = vals[qt]; safe_e(f"v_max3_f32 v{LM[qt]}, v{LM[qt]}, v{v[3+2*k]}, v{v[4+2*k]}")
        for qt in range(3): safe_e(f"v_max_f32 v{LM[qt]}, v{LM[qt]}, v{vals[qt][15]}")
        allreduce("v_max_f32", LM, T1)
        for qt in range(3): e(f"v_sub_f32 v{LM[qt]}, 0xc0e00000, v{LM[qt]}")
    def spread():
        for qt in range(3):
            for i in (0, 2, 3): e(f"v_mov_b32 v{CI(qt)+i}, v{LM[qt]}")
    def half0():
        for qt in range(3):
            for kt in range(4):
                for s in fma(kt, qt): e(s)
        for qt in range(3):
            for kt in range(2):
                for s in exp(kt, qt): e(s)
        for qt in range(3):
            for kt in range(2):
                for s in lsum0(kt, qt): e(s)
        for qt in range(3):
            for kt in range(2):
                for s in cvt(kt, qt): e(s)
    def rescale():
        for qt in range(3): e(f"v_min_f32 v{LM[qt]}, v{LM[qt]}, v{CI(qt)}")
        for qt in range(3): e(f"v_sub_f32 v{T1[qt]}, v{LM[qt]}, v{CI(qt)}")
        for qt in range(3): e(f"v_exp_f32 v{T1[qt]}, v{T1[qt]}")
        e("s_nop 0")
        for qt in range(3):
            for i in range(1 if o.ladd else 4): e(f"v_mul_f32 v{LA(qt)+i}, v{LA(qt)+i}, v{T1[qt]}")
        for T in range(8):
            for qt in range(3):
                for i in range(4): e(f"v_mul_f32 v{O(T,qt)+i}, v{O(T,qt)+i}, v{T1[qt]}")
    weave(phase("K", kgroup, kread, vread, vsync(16) if o.early else None), [], 0, LQ(KTAGS))
    rowmax()
    spread()
    half0()

    def vstep(zero):
        def lm(u): return [("m", f"{MF} {r4(LA(qt))}, {r4(ONES)}, {r4(S(2*u,qt))}, {'0' if zero and u == 0 else r4(LA(qt))}") for qt in range(3)]
        if o.ladd: sp = phase("V", vgroup(zero), vread, kread, ksync() if o.early else None); B = 24
        else: sp = lm(0) + phase("V", vgroup(zero), vread, kread, ksync() if o.early else None) + lm(1); B = 27
        if not o.early:
            for x in vsync(16 if zero else 4): e(x)
        fl = []
        if o.ladd:
            for qt in range(3): fl.append((0, f"v_mov_b32 v{LA(qt)}, v{LA(qt)+1}" if zero else f"v_add_f32 v{LA(qt)}, v{LA(qt)}, v{LA(qt)+1}"))
        def l1(kt, qt):
            if not o.ladd: return []
            b = S(kt, qt)
            return [f"v_add_f32 v{LA(qt)}, v{LA(qt)}, v{b+i}" for i in range(4)]
        for lst in (exp(2,0), exp(3,0), l1(2,0), exp(2,1), cvt(2,0), exp(3,1), cvt(3,0), l1(2,1), exp(2,2), cvt(2,1), exp(3,2), cvt(3,1), l1(2,2), cvt(2,2), cvt(3,2)):
            for s in lst: fl.append((0, s))
        fl.append((B, "DEADLINE"))
        for qt in range(3):
            for s in l1(3, qt): fl.append((0, s))
        for ks in range(4): fl.append((B + ks, f"v_xor_b32 v{KA[ks]}, {SLOT}, v{KA[ks]}"))
        fl.append((B + 5, f"s_add_u32 {sIT}, {sIT}, 1"))
        fl.append((B + 12, "DEADLINE"))
        weave(sp, fl, o.vbud, LQ(VTAGS if not o.trace else []))
    vstep(True)

    e("L_kfast:")
    if not o.early:
        for x in ksync(): e(x)
    fl = []
    for T in range(8): fl.append((3 + T, f"v_xor_b32 v{VA[T]}, {SLOT}, v{VA[T]}"))
    fl.append((36, "DEADLINE"))
    def add(pos, lst):
        for s in lst: fl.append((pos, s))
    def at(kt, qt): return 12 * kt + 9 + qt + 2
    add(at(0,0), exp(0,0)); add(at(0,1), exp(0,1)); add(0, lsum0(0,0)); add(0, cvt(0,0)); add(at(0,2), exp(0,2)); add(0, lsum0(0,1)); add(0, cvt(0,1))
    add(at(1,0), exp(1,0)); add(0, lsum0(0,2)); add(0, cvt(0,2)); add(at(1,1), exp(1,1)); add(0, lsum0(1,0)); add(0, cvt(1,0)); add(at(1,2), exp(1,2)); add(0, lsum0(1,1)); add(0, cvt(1,1))
    OR, MX = TM[0], TM[1]
    P0 = [S(0, qt) + i for qt in range(3) for i in range(4)]
    add(0, [f"v_or3_b32 v{OR}, v{P0[0]}, v{P0[1]}, v{P0[2]}", f"v_or3_b32 v{OR}, v{OR}, v{P0[3]}, v{P0[4]}"])
    add(0, lsum0(1,2)); add(0, cvt(1,2))
    add(0, [f"v_or3_b32 v{OR}, v{OR}, v{P0[5]}, v{P0[6]}", f"v_or3_b32 v{OR}, v{OR}, v{P0[7]}, v{P0[8]}", f"v_or3_b32 v{OR}, v{OR}, v{P0[9]}, v{P0[10]}"])
    add(0, [f"v_or_b32 v{OR}, v{OR}, v{P0[11]}"])
    x2 = [S(2, qt) + i for qt in range(3) for i in range(4)]
    x3 = [S(3, qt) + i for qt in range(3) for i in range(4)]
    add(at(2,0), [f"v_max3_f32 v{MX}, v{x2[0]}, v{x2[1]}, v{x2[2]}"])
    add(0, [f"v_and_b32 v{OR}, {sMASK}, v{OR}"])
    add(at(2,2), [f"v_max3_f32 v{MX}, v{MX}, v{x2[3]}, v{x2[4]}"])
    add(0, [f"v_cmp_ne_u32 {sM}, 0, v{OR}"])
    for k in range(1, 4): add(o.xhold, [f"v_max3_f32 v{MX}, v{MX}, v{x2[3+2*k]}, v{x2[4+2*k]}"])
    xs = [x2[11]] + x3
    for k in range(6): add(99, [f"v_max3_f32 v{MX}, v{MX}, v{xs[2*k]}, v{xs[2*k+1]}"])
    add(99, [f"v_max_f32 v{MX}, v{MX}, v{xs[12]}"])
    weave(phase("K", kgroup_i, kread, vread, vsync(4) if o.early else None), fl, o.kbud, LQ(KTAGS if not o.trace else []))
    e(f"v_cmp_lt_f32 vcc, 1.0, v{MX}")
    e(f"s_or_b64 vcc, vcc, {sM}")
    if not o.nodma: e("s_cbranch_vccnz L_redo")
    e("L_vstep:")
    vstep(False)
    if o.prio == 1:
        pl = lab("pp"); pb = lab("pb"); p2 = lab("pp")
        e(f"s_cmp_eq_u32 {sIT}, 4")
        e(f"s_cbranch_scc1 {pl}")
        e(f"{pb}:")
        tail.append([f"{pl}:", f"s_cmp_eq_u32 {sH}, 1", f"s_cbranch_scc1 {p2}", "s_setprio 0", f"s_branch {pb}", f"{p2}:", "s_setprio 2", f"s_branch {pb}"])
    e(f"s_cmp_lt_u32 {sIT}, 8")
    e("s_cbranch_scc1 L_kfast")
    e("s_waitcnt lgkmcnt(0)")
    e("s_branch L_head")

    e("L_redo:")
    e("s_waitcnt lgkmcnt(0)")
    for f in range(NF): emit_reads(kread(f))
    weave(phase("K", kgroup, kread, vread, []), [], 0, LQ(KTAGS))
    rowmax()
    rescale()
    spread()
    half0()
    e("s_branch L_vstep")
    for blk in tail:
        for s in blk: e(s)
    e("L_fin:")
    if o.stamp:
        e("s_waitcnt vmcnt(0)")
        e("s_memrealtime s[52:53]")
        e("s_memtime s[54:55]")
        e("s_getreg_b32 s58, hwreg(HW_REG_XCC_ID)")
        e("s_getreg_b32 s59, hwreg(HW_REG_HW_ID)")
        e("s_waitcnt lgkmcnt(0)")
        e("s_lshl_b32 s60, s2, 2")
        e(f"s_add_u32 s60, s60, {sW}")
        e("s_lshl_b32 s60, s60, 5")
        e("v_mov_b32 v0, s48"); e("v_mov_b32 v1, s50"); e("v_mov_b32 v2, s52"); e("v_mov_b32 v3, s54")
        e("v_mov_b32 v4, s58"); e("v_mov_b32 v5, s59"); e("v_mov_b32 v6, s61"); e("v_mov_b32 v7, s62")
        e("v_mov_b32 v8, s60")
        e("global_store_dwordx4 v8, v[0:3], s[56:57]")
        e("global_store_dwordx4 v8, v[4:7], s[56:57] offset:16")
        if o.trace:
            e("v_mbcnt_lo_u32_b32 v9, -1, 0")
            e("v_mbcnt_hi_u32_b32 v9, -1, v9")
            e("s_lshl_b32 s60, s60, 3")
            e("s_add_u32 s60, s60, 0x200000")
            e("v_lshl_add_u32 v9, v9, 2, s60")
            e(f"global_store_dword v9, v{TM[2]}, s[56:57]")
    e("L_end:")
    e("s_endpgm")
    L.append('.section .rodata,"a"')
    L.append(".p2align 6")
    L.append(f".amdhsa_kernel {o.name}_kernel")
    L.append("  .amdhsa_next_free_vgpr 256")
    L.append(f"  .amdhsa_next_free_sgpr {96 if o.stamp else 48}")
    L.append("  .amdhsa_accum_offset 256")
    L.append("  .amdhsa_group_segment_fixed_size 0")
    L.append("  .amdhsa_kernarg_size 48")
    L.append("  .amdhsa_user_sgpr_count 2")
    L.append("  .amdhsa_user_sgpr_kernarg_segment_ptr 1")
    L.append("  .amdhsa_system_sgpr_workgroup_id_x 1")
    L.append(".end_amdhsa_kernel")
    return "\n".join(L) + "\n"

if __name__ == "__main__":
    o = Opt()
    out = sys.argv[1]
    for a in sys.argv[2:]:
        k, v = a.split("=")
        cur = getattr(o, k)
        setattr(o, k, (v in ("1", "True", "true")) if isinstance(cur, bool) else type(cur)(v))
    txt = gen(o)
    open(out, "w").write(txt)
    b, n = hazard.check(txt)
    print(f"{out}: {n} instrs, {b} hazards")
```

```python
import sys, math, struct
import hazard

def f2u(x):
    return struct.unpack("<I", struct.pack("<f", x))[0]

class Opt:
    ldpol = "nt"
    stpol = "sc1"
    nh = 2
    nwg = 0
    prio = 1
    stamp = False
    trace = False
    nanfill = False
    wpair = True
    kbud = 8
    vbud = 9
    maxnop = 1
    nf = 4
    odd = ''
    oddpar = 1
    xmap = 0
    psl = True
    deep = False
    kdma = -1
    vdma = -1
    pth = '4,8,12'
    skip0 = True
    q5 = True
    early = False
    ladd = False
    xhold = 99
    nodma = False
    name = "standalone__gqa_softmax__near_ridge"

def cost(s):
    if s.startswith("v_exp") or s.startswith("v_rcp"): return 8
    return 4

def gen(o):
    L = []
    def e(s=""):
        L.append("    " + s if s and not s.endswith(":") else s)
    nwg = o.nwg or 1024 // o.nh
    SLOT = 16384; LDS = 5 * SLOT
    ntl = (" " + o.ldpol.replace("_", " ")) if o.ldpol not in ("", "none") else ""
    nts = (" " + o.stpol.replace("_", " ")) if o.stpol not in ("", "none") else ""
    NF = o.nf
    def O(T, qt): return (T * 3 + qt) * 4
    def LA(qt): return 96 + qt * 4
    def Q(qt, ks): return 108 + (qt * 4 + ks) * 4
    def S(kt, qt): return 156 + (kt * 3 + qt) * 4
    ONES = 204
    def CI(qt): return 208 + qt * 4
    def F(i): return 220 + (i % NF) * 4
    b0 = 220 + NF * 4
    DK, DV = b0, b0 + 1
    KA = [b0 + 2 + i for i in range(4)]
    VA = [b0 + 6 + i for i in range(8)]
    TM = [b0 + 14 + i for i in range(3)]
    assert TM[-1] < 256
    def r4(b): return f"v[{b}:{b+3}]"
    def r2(b): return f"v[{b}:{b+1}]"
    SQ, SK, SV, SO = "s[4:7]", "s[8:11]", "s[12:15]", "s[16:19]"
    sW, sW4K, sK, sV, sIT, sH = "s20", "s21", "s22", "s23", "s24", "s25"
    sKV, sKVN, sQN, sOO, sC, sT0, sT1 = "s26", "s27", "s28", "s29", "s30", "s33", "s34"
    sM = "s[38:39]"; sMASK = "s41"; sSO = "s42"
    OOB = 0x40000000
    NQ, NK = 50331648, 134217728
    MF = "v_mfma_f32_16x16x32_bf16"
    uid = [0]
    def lab(p):
        uid[0] += 1
        return f"L_{p}_{uid[0]}"
    tail = []

    L.append(f"; @launch grid=({nwg},1,1) block=(256,1,1) lds={LDS}")
    L.append('.amdgcn_target "amdgcn-amd-amdhsa--gfx950"')
    L.append(".text")
    L.append(f".globl {o.name}_kernel")
    L.append(".p2align 8")
    L.append(f".type {o.name}_kernel,@function")
    L.append(f"{o.name}_kernel:")
    e(f"s_cmp_ge_u32 s2, {nwg}")
    e("s_cbranch_scc1 L_end")
    if o.stamp:
        e("s_memrealtime s[48:49]")
        e("s_memtime s[50:51]")
        e("s_load_dwordx2 s[56:57], s[0:1], 40")
    e("s_load_dwordx4 s[36:39], s[0:1], 0")
    e("s_load_dwordx4 s[40:43], s[0:1], 16")
    e("v_and_b32 v9, 63, v0")
    e("v_lshrrev_b32 v1, 6, v0")
    e("v_and_b32 v2, 15, v9")
    e(f"v_readfirstlane_b32 {sW}, v1")
    e("v_lshrrev_b32 v3, 4, v9")
    e("v_lshrrev_b32 v4, 2, v2")
    e("v_and_b32 v5, 3, v2")
    e(f"s_lshl_b32 {sW4K}, {sW}, 12")
    e(f"s_lshl_b32 {sT0}, {sW}, 2")
    e("v_lshlrev_b32 v6, 8, v3")
    e(f"v_add_u32 v6, {sW4K}, v6")
    e(f"v_add_u32 v7, {sT0}, v3")
    e("v_xor_b32 v7, v7, v2")
    e(f"v_lshl_add_u32 v{DK}, v7, 4, v6")
    if o.xmap == 1:
        e(f"s_and_b32 {sT0}, s2, 7")
        e(f"s_lshl_b32 {sT0}, {sT0}, 6")
        e(f"s_lshr_b32 {sT1}, s2, 3")
        e(f"s_add_u32 {sT0}, {sT0}, {sT1}")
        e(f"s_lshl_b32 {sT0}, {sT0}, 1")
    else: e(f"s_mul_i32 {sT0}, s2, {o.nh}")
    e(f"s_lshl_b32 {sKVN}, {sT0}, 17")
    e(f"s_mul_i32 {sQN}, {sT0}, 49152")
    e(f"s_mov_b32 m0, {sW4K}")
    e(f"s_add_u32 {sT0}, {sQN}, {SLOT}")
    e(f"s_add_u32 {sT1}, {sQN}, {2*SLOT}")
    e("s_mov_b32 s6, " + str(NQ))
    e("s_mov_b32 s7, 0x20000")
    e("s_waitcnt lgkmcnt(0)")
    e("s_mov_b32 s4, s36")
    e("s_and_b32 s5, s37, 0xffff")
    def dma1(srd, soff, voff, j):
        off = f" offset:{1024*j}" if j else ""
        return f"buffer_load_dwordx4 v{voff}, {srd}, {soff} offen{off}{ntl} lds"
    def dma(srd, soff, voff):
        for j in range(4): e(dma1(srd, soff, voff, j))
    dma(SQ, sQN, DK)
    e(f"s_add_u32 m0, {sW4K}, {2*SLOT}")
    e("s_mov_b32 s8, s38")
    dma(SQ, sT0, DK)
    e(f"s_add_u32 m0, {sW4K}, {4*SLOT}")
    e("s_and_b32 s9, s39, 0xffff")
    dma(SQ, sT1, DK)
    e(f"s_mov_b32 s10, {NK}"); e("s_mov_b32 s11, 0x20000")
    for (b, p, n) in ((12, 40, NK), (16, 42, NQ)):
        e(f"s_mov_b32 s{b}, s{p}")
        e(f"s_and_b32 s{b+1}, s{p+1}, 0xffff")
        e(f"s_mov_b32 s{b+2}, {n}")
        e(f"s_mov_b32 s{b+3}, 0x20000")
    e(f"s_and_b32 {sT0}, {sW}, 1")
    e(f"s_lshl_b32 {sT0}, {sT0}, 2")
    e(f"v_add_u32 v7, {sT0}, v3")
    e("v_lshlrev_b32 v7, 1, v7")
    e("v_xor_b32 v7, v7, v2")
    e(f"v_lshl_add_u32 v{DV}, v7, 4, v6")
    e("v_lshlrev_b32 v6, 12, v4")
    e("v_lshl_add_u32 v6, v5, 8, v6")
    e("v_xor_b32 v7, v3, v2")
    e(f"v_lshl_add_u32 v{KA[0]}, v7, 4, v6")
    for ks in range(1, 4): e(f"v_xor_b32 v{KA[ks]}, {ks<<6}, v{KA[0]}")
    e("v_lshlrev_b32 v6, 12, v3")
    e("v_lshl_add_u32 v6, v4, 8, v6")
    e("v_and_b32 v7, 1, v3")
    e("v_lshl_add_u32 v7, v7, 2, v4")
    e("v_lshlrev_b32 v7, 1, v7")
    e("v_lshrrev_b32 v8, 1, v5")
    e("v_xor_b32 v7, v7, v8")
    e("v_lshl_add_u32 v6, v7, 4, v6")
    e("v_and_b32 v8, 1, v2")
    e("v_lshl_add_u32 v6, v8, 3, v6")
    e(f"v_add_u32 v{VA[0]}, {3*SLOT}, v6")
    for T in range(1, 8): e(f"v_xor_b32 v{VA[T]}, {T<<5}, v{VA[0]}")
    for i in range(4): e(f"v_mov_b32 v{ONES+i}, 0x3f803f80")
    e(f"s_add_u32 {sK}, {sW4K}, {SLOT}")
    e(f"s_add_u32 {sV}, {sW4K}, {3*SLOT}")
    e(f"s_mov_b32 {sC}, {hex(f2u(math.log2(math.e) / math.sqrt(128.0)))}")
    e(f"s_mov_b32 {sMASK}, 0x40004000")
    e(f"s_mov_b32 {sH}, 0")
    e(f"s_mov_b32 {sOO}, {OOB}")
    if o.stamp:
        e("s_mov_b32 s61, 0"); e("s_mov_b32 s62, 0")
    if o.prio == 1:
        e("s_setprio 3"); e("s_mov_b32 s31, 0"); e(f"s_mov_b32 s32, {o.pth.split(',')[0]}")
    if o.nanfill:
        for i in range(108): e(f"v_mov_b32 v{i}, 0x7fc00000")
    def tr():
        if not o.trace: return []
        return ["s_memrealtime s[66:67]", "s_memtime s[68:69]", "s_waitcnt lgkmcnt(0)", "s_mov_b32 s71, m0", "s_mov_b32 m0, s70", "s_nop 0",
                f"v_writelane_b32 v{TM[2]}, s66, m0", "s_add_u32 m0, s70, 32", "s_nop 0", f"v_writelane_b32 v{TM[2]}, s68, m0", "s_mov_b32 m0, s71", "s_add_u32 s70, s70, 1"]
    if o.trace:
        e("s_mov_b32 s70, 0")
        e(f"v_mov_b32 v{TM[2]}, 0")

    def allreduce(op, x, t):
        for a, b in zip(x, t): e(f"v_mov_b32 v{b}, v{a}")
        e("s_nop 1")
        for a, b in zip(x, t): e(f"v_permlane16_swap_b32 v{a}, v{b}")
        for a, b in zip(x, t): e(f"{op} v{a}, v{a}, v{b}")
        for a, b in zip(x, t): e(f"v_mov_b32 v{b}, v{a}")
        e("s_nop 1")
        for a, b in zip(x, t): e(f"v_permlane32_swap_b32 v{a}, v{b}")
        for a, b in zip(x, t): e(f"{op} v{a}, v{a}, v{b}")

    class LQ:
        def __init__(s, pre=()): s.q = list(pre)
        def read(s, tag): s.q.append(tag); assert len(s.q) <= 15, s.q
        def wait(s, tag):
            if tag not in s.q: return None
            i = len(s.q) - 1 - s.q[::-1].index(tag)
            n = len(s.q) - 1 - i
            s.q = s.q[i + 1:]
            return f"s_waitcnt lgkmcnt({n})"
    def short(text):
        c = hazard.I(text, 0); d = 0; miss = 0
        for ln in reversed(L):
            t = ln.strip()
            if t.endswith(":"): continue
            if t.startswith("s_branch") or t.startswith("s_endpgm") or d >= 13: break
            p = hazard.I(t, 0)
            miss = max(miss, hazard.need(p, c) - d)
            d += p.states
        return miss
    def safe_e(x):
        m = short(x)
        if m > 0: e(f"s_nop {m-1}")
        e(x)
    def weave(spine, fillers, bud, lq):
        q = list(fillers); j = -1; credit = 0
        for s in spine:
            if s[0] == "r": lq.read(s[1]); e(s[2]); continue
            if s[0] == "x":
                for x in s[1]: e(x)
                if o.trace and any("lgkmcnt(0)" in x for x in s[1]): lq.q = []
                continue
            if s[0] == "w":
                w = lq.wait(s[1])
                if w: e(w)
                continue
            dl = [i for i, x in enumerate(q) if x[1] == "DEADLINE" and x[0] <= j + 1]
            if dl:
                for _, ins in q[:dl[-1] + 1]:
                    if ins == "DEADLINE": continue
                    for x in (ins if isinstance(ins, list) else [ins]): safe_e(x)
                q = q[dl[-1] + 1:]
            safe_e(s[1])
            j += 1
            credit += bud
            while q and (q[0][0] <= j or q[0][1] == "DEADLINE") and credit > 0:
                if q[0][1] == "DEADLINE": q.pop(0); continue
                ins = q[0][1] if isinstance(q[0][1], list) else [q[0][1]]
                if short(ins[0]) > o.maxnop: break
                q.pop(0)
                for x in ins:
                    safe_e(x); credit -= cost(x)
            credit = min(credit, bud)
        for _, ins in q:
            if ins == "DEADLINE": continue
            for x in (ins if isinstance(ins, list) else [ins]): safe_e(x)

    def kread(f):
        kt, ks = f >> 2, f & 3
        off = f" offset:{kt*1024}" if kt else ""
        return [("r", f"K{f}", f"ds_read_b128 {r4(F(f))}, v{KA[ks]}{off}")]
    def vread(f):
        u, T = f >> 3, f & 7
        r = []
        for ee in range(2):
            off = 2048 * u + 1024 * ee
            offs = f" offset:{off}" if off else ""
            r.append(("r", f"V{f}", f"ds_read_b64_tr_b16 {r2(F(f)+2*ee)}, v{VA[T]}{offs}"))
        return r
    KTAGS = [f"K{f}" for f in range(NF)]
    VTAGS = [f"V{f}" for f in range(NF) for _ in range(2)]
    def emit_reads(lst):
        for x in lst: e(x[2])
    def phase(n, group, own, nxt, sync, late=None):
        sp = []
        for f in range(16):
            if not o.wpair: sp.append(("w", f"{n}{f}"))
            elif f % 2 == 0: sp.append(("w", f"{n}{f+1}"))
            sp += group(f)
            if f + NF < 16: sp += own(f + NF)
            if late and f == late[0]: sp.append(("x", late[1]))
            if nxt and o.early:
                if f == 12: sp.append(("x", sync))
                if f >= 12: sp += nxt(f - 12)
                if f == 15:
                    for j in range(4, NF): sp += nxt(j)
        return sp
    def kgroup_(init):
        def g(f):
            kt, ks = f >> 2, f & 3
            return [("m", f"{MF} {r4(S(kt,qt))}, {r4(F(f))}, {r4(Q(qt,ks))}, {(r4(CI(qt)) if init else '0') if ks == 0 else r4(S(kt, qt))}") for qt in range(3)]
        return g
    kgroup = kgroup_(False); kgroup_i = kgroup_(True)
    def vgroup(zero):
        def g(f):
            u, T = f >> 3, f & 7
            return [("m", f"{MF} {r4(O(T,qt))}, {r4(F(f))}, {r4(S(2*u,qt))}, {'0' if zero and u == 0 else r4(O(T,qt))}") for qt in range(3)]
        return g
    def fma(kt, qt): return [f"v_add_f32 v{S(kt,qt)+i}, v{S(kt,qt)+i}, v{CI(qt)}" for i in range(4)]
    def exp(kt, qt): return [f"v_exp_f32 v{S(kt,qt)+i}, v{S(kt,qt)+i}" for i in range(4)]
    def cvt(kt, qt):
        b = S(kt & ~1, qt) + 2 * (kt & 1); s = S(kt, qt)
        return [f"v_cvt_pk_bf16_f32 v{b}, v{s}, v{s+1}", f"v_cvt_pk_bf16_f32 v{b+1}, v{s+2}, v{s+3}"]
    def lsum0(kt, qt):
        b = S(kt, qt); t = LA(qt) + 1
        if not o.ladd: return []
        if kt == 0: return [f"v_add_f32 v{t}, v{b}, v{b+1}", f"v_add_f32 v{t}, v{t}, v{b+2}", f"v_add_f32 v{t}, v{t}, v{b+3}"]
        return [f"v_add_f32 v{t}, v{t}, v{b+i}" for i in range(4)]
    def lsum1(kt, qt):
        b = S(kt, qt); t = LA(qt) + (kt & 1)
        return [f"v_add_f32 v{t}, v{t}, v{b+i}" for i in range(4)] if o.ladd else []
    def vsync(vm, part="all"):
        sp_l = lab("vr"); back = lab("vb")
        h = [f"s_mov_b32 m0, {sV}", f"s_xor_b32 {sV}, {sV}, {SLOT}", f"s_lshl_b32 {sSO}, {sIT}, 14", f"s_add_u32 {sSO}, {sSO}, {sKV}"]
        h += [f"s_cmp_eq_u32 {sIT}, 7"] if part == "all" else []
        if o.deep and vm == 4:
            w1, wb = lab("vw"), lab("vwb")
            h = h[:4] + [f"s_cmp_eq_u32 {sIT}, 1", f"s_cbranch_scc1 {w1}", "s_waitcnt vmcnt(4)", f"{wb}:"] + h[4:]
            tail.append([f"{w1}:", "s_waitcnt vmcnt(16)", f"s_branch {wb}"])
        else: h += [f"s_waitcnt vmcnt({vm})"]
        h += ["s_barrier"] + ([] if o.early else [x[2] for f in range(NF) for x in vread(f)]) + tr()
        if part == "head": return h
        r = ([f"s_cmp_eq_u32 {sIT}, 7"] if o.trace or part == "refill" else []) + [f"s_cbranch_scc1 {sp_l}"]
        if not o.nodma: r += [dma1(SV, sSO, DV, j) for j in range(4)]
        r += [f"{back}:"]
        tail.append([f"{sp_l}:", f"s_add_u32 {sT0}, {sQN}, {SLOT}"] + [dma1(SQ, sT0, DK, j) for j in range(4)]
                    + [f"s_add_u32 m0, {sW4K}, {4*SLOT}", f"s_add_u32 {sT0}, {sQN}, {2*SLOT}"] + [dma1(SQ, sT0, DK, j) for j in range(4)] + [f"s_branch {back}"])
        return r if part == "refill" else h + r
    def ksync(part="all"):
        sp_l = lab("kr"); back = lab("kb")
        h = [f"s_cmp_eq_u32 {sIT}, 8", f"s_cbranch_scc1 {back}"] if o.early else []
        h += [f"s_mov_b32 m0, {sK}", f"s_xor_b32 {sK}, {sK}, {SLOT}", f"s_lshl_b32 {sSO}, {sIT}, 14", f"s_add_u32 {sSO}, {sSO}, {sKV}"]
        h += [f"s_cmp_eq_u32 {sIT}, 7"] if part == "all" else []
        if part == "refill": pass
        elif o.deep:
            w1, wb = lab("kw"), lab("kwb")
            h = h[:-1 if part == "all" else None] + [f"s_cmp_eq_u32 {sIT}, 1", f"s_cbranch_scc1 {w1}", "s_waitcnt vmcnt(4)", f"{wb}:"] + (h[-1:] if part == "all" else [])
            tail.append([f"{w1}:", "s_waitcnt vmcnt(16)", f"s_branch {wb}"])
        else: h += ["s_waitcnt vmcnt(4)"]
        h += ["s_barrier"] + ([] if o.early else [x[2] for f in range(NF) for x in kread(f)]) + tr()
        if part == "head": return h + ([f"{back}:"] + (["s_waitcnt lgkmcnt(0)"] if o.trace else []) if o.early else [])
        r = ([f"s_cmp_eq_u32 {sIT}, 7"] if o.trace or part == "refill" else []) + [f"s_cbranch_scc1 {sp_l}"]
        if not o.nodma: r += [dma1(SK, sSO, DK, j) for j in range(4)]
        r += [f"{back}:"]
        if o.trace and o.early and part == "all": r += ["s_waitcnt lgkmcnt(0)"]
        tail.append([f"{sp_l}:"] + [dma1(SQ, sQN, DK, j) for j in range(4)] + [f"s_branch {back}"])
        return r if part == "refill" else h + r

    def emit_body(sfx):
        del tail[:]
        e(f"L_head{sfx}:")
        X = [S(0, 0) + i for i in range(16)]
        AX = [S(2, 0) + i for i in range(12)]
        e(f"v_mbcnt_lo_u32_b32 v{X[8]}, -1, 0")
        e(f"v_mbcnt_hi_u32_b32 v{X[8]}, -1, v{X[8]}")
        e(f"v_and_b32 v{X[0]}, 15, v{X[8]}")
        e(f"v_lshrrev_b32 v{X[1]}, 4, v{X[8]}")
        e(f"v_lshlrev_b32 v{X[3]}, 8, v{X[0]}")
        e(f"s_lshl_b32 {sT0}, {sW}, 2")
        e(f"v_and_b32 v{X[2]}, 3, v{X[0]}")
        e(f"v_add_u32 v{X[2]}, {sT0}, v{X[2]}")
        e(f"v_xor_b32 v{X[2]}, v{X[2]}, v{X[1]}")
        e(f"v_lshl_add_u32 v{X[9]}, v{X[2]}, 4, v{X[3]}")
        e(f"v_add_u32 v{X[9]}, {sW4K}, v{X[9]}")
        for ks in range(1, 4): e(f"v_xor_b32 v{AX[ks]}, {ks<<6}, v{X[9]}")
        e(f"s_cmp_eq_u32 {sH}, {o.nh}")
        e(f"s_cbranch_scc1 L_last{sfx}")
        tail.append([f"L_last{sfx}:", "s_waitcnt vmcnt(0)", f"s_branch L_oproc{sfx}"])
        if o.deep: e("s_barrier")
        for j in range(3):
            qpos = [0, 2, 4][j]
            if j == 2:
                for a in [X[9]] + AX[1:4]: e(f"v_add_u32 v{a}, {4*SLOT}, v{a}")
            e("s_waitcnt vmcnt(8)")
            for ks in range(4): e(f"ds_read_b128 {r4(Q(j,ks))}, v{X[9] if ks == 0 else AX[ks]} offset:{(qpos & 3)*SLOT}")
            if j < 2:
                e(f"s_add_u32 m0, {sW4K}, {qpos*SLOT}")
                e("s_waitcnt lgkmcnt(0)")
                dma(SK if j == 0 else SV, sKVN, DK if j == 0 else DV)
            else:
                if o.deep:
                    e(f"s_add_u32 m0, {sW4K}, {SLOT}")
                    e(f"s_add_u32 {sT0}, {sKVN}, {SLOT}")
                    dma(SK, sT0, DK)
                    e(f"s_add_u32 m0, {sW4K}, {3*SLOT}")
                    e("s_nop 0")
                    dma(SV, sT0, DV)
                e("s_waitcnt lgkmcnt(0)")
            for r in (range(48) if j == 2 else []) if o.psl else range(16 * j, 16 * j + 16):
                q = Q(0, 0) + r; t0 = CI(0) + 2 * (r % 3); t1 = t0 + 1
                e(f"v_lshlrev_b32 v{t0}, 16, v{q}")
                e(f"v_and_b32 v{t1}, 0xffff0000, v{q}")
                e(f"v_mul_f32 v{t0}, {sC}, v{t0}")
                e(f"v_mul_f32 v{t1}, {sC}, v{t1}")
                e(f"v_cvt_pk_bf16_f32 v{q}, v{t0}, v{t1}")
        if o.skip0:
            e(f"s_cmp_eq_u32 {sH}, 0")
            e(f"s_cbranch_scc1 L_first{sfx}")
            tail.append([f"L_first{sfx}:"] + [f"buffer_store_dwordx4 {r4(F(0))}, v{X[9]}, {SO}, {sOO} offen{nts}"] * 12 + [f"s_branch L_ohead{sfx}"])
        e(f"L_oproc{sfx}:")
        if o.ladd: allreduce("v_add_f32", [LA(j) for j in range(3)], [LA(j) + 1 for j in range(3)])
        for j in range(3): e(f"v_rcp_f32 v{X[13+j]}, v{LA(j)}")
        e(f"s_add_u32 {sT1}, {sW4K}, {4*SLOT}")
        e(f"v_lshrrev_b32 v{X[2]}, 1, v{X[1]}")
        e(f"v_xor_b32 v{X[2]}, v{X[2]}, v{X[0]}")
        e(f"v_lshl_add_u32 v{X[2]}, v{X[2]}, 4, v{X[3]}")
        e(f"v_and_b32 v{X[5]}, 1, v{X[1]}")
        e(f"v_lshl_add_u32 v{X[6]}, v{X[5]}, 3, v{X[2]}")
        e(f"v_add_u32 v{AX[4]}, {sT1}, v{X[6]}")
        for T in range(1, 8): e(f"v_xor_b32 v{AX[4+T]}, {T<<5}, v{AX[4]}")
        e(f"v_xor_b32 v{X[2]}, v{X[0]}, v{X[1]}")
        e(f"v_lshlrev_b32 v{X[2]}, 4, v{X[2]}")
        e(f"v_lshl_add_u32 v{X[7]}, v{X[1]}, 8, v{X[2]}")
        e(f"v_add_u32 v{AX[0]}, {sT1}, v{X[7]}")
        for jj in range(1, 4): e(f"v_xor_b32 v{AX[jj]}, {jj<<6}, v{AX[0]}")
        e(f"v_lshlrev_b32 v{X[12]}, 4, v{X[8]}")
        e(f"v_add_u32 v{X[12]}, {sW4K}, v{X[12]}")
        RB = [[F(jj) for jj in range(4)], [S(1,1), S(1,2), S(3,0), S(3,1)], [F(jj) for jj in range(4)]]
        def norm(j):
            for T in range(8):
                b = O(T, j)
                for i in range(4): e(f"v_mul_f32 v{b+i}, v{b+i}, v{X[13+j]}")
            for T in range(8):
                b = O(T, j)
                e(f"v_cvt_pk_bf16_f32 v{b}, v{b}, v{b+1}")
                e(f"v_cvt_pk_bf16_f32 v{b+1}, v{b+2}, v{b+3}")
        def stage(j):
            for T in range(8): e(f"ds_write_b64 v{AX[4+T]}, {r2(O(T, j))}")
            for jj in range(4): e(f"ds_read_b128 {r4(RB[j][jj])}, v{AX[jj]} offset:{jj*1024}")
        def store(j):
            e(f"s_add_u32 {sT0}, {sOO}, {j*SLOT}")
            for jj in range(4):
                e(f"s_waitcnt lgkmcnt({3-jj})")
                e(f"buffer_store_dwordx4 {r4(RB[j][jj])}, v{X[12]}, {SO}, {sT0} offen offset:{jj*1024}{nts}")
        norm(0); e("s_waitcnt lgkmcnt(0)"); stage(0); norm(1); store(0); stage(1); norm(2); store(1); stage(2); store(2)
        e(f"s_cmp_eq_u32 {sH}, {o.nh}")
        e("s_cbranch_scc1 L_fin")
        e(f"L_ohead{sfx}:")
        e(f"s_mov_b32 {sOO}, {sQN}")
        e(f"s_add_u32 {sKV}, {sKVN}, {SLOT}")
        e(f"s_add_u32 {sH}, {sH}, 1")
        e(f"s_add_u32 {sKVN}, {sKVN}, 131072")
        e(f"s_add_u32 {sQN}, {sQN}, 49152")
        e(f"s_cmp_eq_u32 {sH}, {o.nh}")
        e(f"s_cselect_b32 {sKVN}, {OOB}, {sKVN}")
        e(f"s_cselect_b32 {sQN}, {OOB}, {sQN}")
        e(f"s_mov_b32 {sIT}, 0")
        if o.stamp:
            e("s_mov_b32 s61, s62")
            e("s_memrealtime s[62:63]")
            e("s_waitcnt lgkmcnt(0)")

        e(f"s_mov_b32 m0, {sK}")
        e(f"s_xor_b32 {sK}, {sK}, {SLOT}")
        for T in range(8): e(f"v_xor_b32 v{VA[T]}, {SLOT}, v{VA[T]}")
        e(f"s_waitcnt vmcnt({24 if o.deep else 16})")
        e("s_barrier")
        for x in tr(): e(x)
        for f in range(NF): emit_reads(kread(f))
        if not o.deep: dma(SK, sKV, DK)
        LM = [CI(qt) + 1 for qt in range(3)]; T1 = [CI(qt) + 2 for qt in range(3)]
        vals = [[S(kt, qt) + i for kt in range(4) for i in range(4)] for qt in range(3)]
        def rowmax():
            for qt in range(3):
                v = vals[qt]; safe_e(f"v_max3_f32 v{LM[qt]}, v{v[0]}, v{v[1]}, v{v[2]}")
            for k in range(6):
                for qt in range(3):
                    v = vals[qt]; safe_e(f"v_max3_f32 v{LM[qt]}, v{LM[qt]}, v{v[3+2*k]}, v{v[4+2*k]}")
            for qt in range(3): safe_e(f"v_max_f32 v{LM[qt]}, v{LM[qt]}, v{vals[qt][15]}")
            allreduce("v_max_f32", LM, T1)
            for qt in range(3): e(f"v_sub_f32 v{LM[qt]}, 0xc0e00000, v{LM[qt]}")
        def spread():
            for qt in range(3):
                for i in (0, 2, 3): e(f"v_mov_b32 v{CI(qt)+i}, v{LM[qt]}")
        def half0():
            for qt in range(3):
                for kt in range(4):
                    for s in fma(kt, qt): e(s)
            for qt in range(3):
                for kt in range(2):
                    for s in exp(kt, qt): e(s)
            for qt in range(3):
                for kt in range(2):
                    for s in lsum0(kt, qt): e(s)
            for qt in range(3):
                for kt in range(2):
                    for s in cvt(kt, qt): e(s)
        def rescale():
            for qt in range(3): e(f"v_min_f32 v{LM[qt]}, v{LM[qt]}, v{CI(qt)}")
            for qt in range(3): e(f"v_sub_f32 v{T1[qt]}, v{LM[qt]}, v{CI(qt)}")
            for qt in range(3): e(f"v_exp_f32 v{T1[qt]}, v{T1[qt]}")
            e("s_nop 0")
            for qt in range(3):
                for i in range(1 if o.ladd else 4): e(f"v_mul_f32 v{LA(qt)+i}, v{LA(qt)+i}, v{T1[qt]}")
            for T in range(8):
                for qt in range(3):
                    for i in range(4): e(f"v_mul_f32 v{O(T,qt)+i}, v{O(T,qt)+i}, v{T1[qt]}")
        weave(phase("K", kgroup, kread, vread, vsync(16, "head" if o.vdma >= 0 else "all") if o.early else None), [], 0, LQ(KTAGS))
        rowmax()
        spread()
        half0()

        sG, sTH = "s31", "s32"
        def prio_step():
            if o.prio != 1: return
            th = [int(x) for x in o.pth.split(",")]
            pl = lab("pp"); pb = lab("pb")
            e(f"s_add_u32 {sG}, {sG}, 1")
            e(f"s_cmp_eq_u32 {sG}, {sTH}")
            e(f"s_cbranch_scc1 {pl}")
            e(f"{pb}:")
            a, b = lab("pa"), lab("pa")
            tail.append([f"{pl}:", f"s_cmp_eq_u32 {sG}, {th[0]}", f"s_cbranch_scc1 {a}", f"s_cmp_eq_u32 {sG}, {th[1]}", f"s_cbranch_scc1 {b}",
                         "s_setprio 0", f"s_branch {pb}", f"{a}:", "s_setprio 2", f"s_mov_b32 {sTH}, {th[1]}", f"s_branch {pb}",
                         f"{b}:", "s_setprio 1", f"s_mov_b32 {sTH}, {th[2]}", f"s_branch {pb}"])
        def vstep(zero):
            def lm(u): return [("m", f"{MF} {r4(LA(qt))}, {r4(ONES)}, {r4(S(2*u,qt))}, {'0' if zero and u == 0 else r4(LA(qt))}") for qt in range(3)]
            assert not (o.deep and o.early)
            late = (o.vdma, vsync(0, "refill")) if o.vdma >= 0 and not (zero and o.deep) else None
            assert o.vdma < 9
            if o.ladd: sp = phase("V", vgroup(zero), vread, kread, ksync("head" if o.kdma >= 0 else "all") if o.early else None, late); B = 24
            else: sp = lm(0) + phase("V", vgroup(zero), vread, kread, ksync("head" if o.kdma >= 0 else "all") if o.early else None, late) + lm(1); B = 27
            if not o.early:
                for x in vsync((20 if o.deep else 16) if zero else 4, "head" if late or (zero and o.deep) else "all"): e(x)
            fl = []
            if o.ladd:
                for qt in range(3): fl.append((0, f"v_mov_b32 v{LA(qt)}, v{LA(qt)+1}" if zero else f"v_add_f32 v{LA(qt)}, v{LA(qt)}, v{LA(qt)+1}"))
            def l1(kt, qt):
                if not o.ladd: return []
                b = S(kt, qt)
                return [f"v_add_f32 v{LA(qt)}, v{LA(qt)}, v{b+i}" for i in range(4)]
            for lst in (exp(2,0), exp(3,0), l1(2,0), exp(2,1), cvt(2,0), exp(3,1), cvt(3,0), l1(2,1), exp(2,2), cvt(2,1), exp(3,2), cvt(3,1), l1(2,2), cvt(2,2), cvt(3,2)):
                for s in lst: fl.append((0, s))
            fl.append((B, "DEADLINE"))
            for qt in range(3):
                for s in l1(3, qt): fl.append((0, s))
            for ks in range(4): fl.append((B + ks, f"v_xor_b32 v{KA[ks]}, {SLOT}, v{KA[ks]}"))
            fl.append((B + 5, f"s_add_u32 {sIT}, {sIT}, 1"))
            fl.append((B + 12, "DEADLINE"))
            weave(sp, fl, o.vbud, LQ(VTAGS if not o.trace else []))
        vstep(True)
        prio_step()

        e(f"L_kfast{sfx}:")
        klate = (o.kdma, ksync("refill")) if o.kdma >= 0 else None
        if not o.early:
            for x in ksync("head" if klate else "all"): e(x)
        fl = []
        for T in range(8): fl.append((3 + T, f"v_xor_b32 v{VA[T]}, {SLOT}, v{VA[T]}"))
        fl.append((36, "DEADLINE"))
        def add(pos, lst):
            for s in lst: fl.append((pos, s))
        def at(kt, qt): return 12 * kt + 9 + qt + 2
        add(at(0,0), exp(0,0)); add(at(0,1), exp(0,1)); add(0, lsum0(0,0)); add(0, cvt(0,0)); add(at(0,2), exp(0,2)); add(0, lsum0(0,1)); add(0, cvt(0,1))
        add(at(1,0), exp(1,0)); add(0, lsum0(0,2)); add(0, cvt(0,2)); add(at(1,1), exp(1,1)); add(0, lsum0(1,0)); add(0, cvt(1,0)); add(at(1,2), exp(1,2)); add(0, lsum0(1,1)); add(0, cvt(1,1))
        OR, MX = TM[0], TM[1]
        P0 = [S(0, qt) + i for qt in range(3) for i in range(4)]
        add(0, [f"v_or3_b32 v{OR}, v{P0[0]}, v{P0[1]}, v{P0[2]}", f"v_or3_b32 v{OR}, v{OR}, v{P0[3]}, v{P0[4]}"])
        add(0, lsum0(1,2)); add(0, cvt(1,2))
        add(0, [f"v_or3_b32 v{OR}, v{OR}, v{P0[5]}, v{P0[6]}", f"v_or3_b32 v{OR}, v{OR}, v{P0[7]}, v{P0[8]}", f"v_or3_b32 v{OR}, v{OR}, v{P0[9]}, v{P0[10]}"])
        add(0, [f"v_or_b32 v{OR}, v{OR}, v{P0[11]}"])
        x2 = [S(2, qt) + i for qt in range(3) for i in range(4)]
        x3 = [S(3, qt) + i for qt in range(3) for i in range(4)]
        add(at(2,0), [f"v_max3_f32 v{MX}, v{x2[0]}, v{x2[1]}, v{x2[2]}"])
        add(0, [f"v_and_b32 v{OR}, {sMASK}, v{OR}"])
        add(at(2,2), [f"v_max3_f32 v{MX}, v{MX}, v{x2[3]}, v{x2[4]}"])
        add(0, [f"v_cmp_ne_u32 {sM}, 0, v{OR}"])
        for k in range(1, 4): add(o.xhold, [f"v_max3_f32 v{MX}, v{MX}, v{x2[3+2*k]}, v{x2[4+2*k]}"])
        xs = [x2[11]] + x3
        for k in range(6): add(99, [f"v_max3_f32 v{MX}, v{MX}, v{xs[2*k]}, v{xs[2*k+1]}"])
        add(99, [f"v_max_f32 v{MX}, v{MX}, v{xs[12]}"])
        weave(phase("K", kgroup_i, kread, vread, vsync(4, "head" if o.vdma >= 0 else "all") if o.early else None, klate), fl, o.kbud, LQ(KTAGS if not o.trace else []))
        e(f"v_cmp_lt_f32 vcc, 1.0, v{MX}")
        e(f"s_or_b64 vcc, vcc, {sM}")
        if not o.nodma: e(f"s_cbranch_vccnz L_redo{sfx}")
        e(f"L_vstep{sfx}:")
        vstep(False)
        prio_step()
        e(f"s_cmp_lt_u32 {sIT}, 8")
        e(f"s_cbranch_scc1 L_kfast{sfx}")
        e("s_waitcnt lgkmcnt(0)")
        e(f"s_branch L_head{sfx}")

        e(f"L_redo{sfx}:")
        e("s_waitcnt lgkmcnt(0)")
        for f in range(NF): emit_reads(kread(f))
        weave(phase("K", kgroup, kread, vread, []), [], 0, LQ(KTAGS))
        rowmax()
        rescale()
        spread()
        half0()
        e(f"s_branch L_vstep{sfx}")
        for blk in tail:
            for s in blk: e(s)
    if o.odd:
        base = dict(early=o.early, kdma=o.kdma, vdma=o.vdma)
        e(f"s_getreg_b32 {sT0}, hwreg(HW_REG_XCC_ID)")
        e(f"s_and_b32 {sT0}, {sT0}, 1")
        e(f"s_cmp_eq_u32 {sT0}, {o.oddpar}")
        e("s_cbranch_scc1 L_head_b")
        emit_body("")
        pr = o.odd.split(",")
        o.early, o.kdma, o.vdma = pr[0] == "1", int(pr[1]), int(pr[2])
        if len(pr) > 3: o.ladd, o.kbud, o.vbud = pr[3] == "1", int(pr[4]), int(pr[5])
        if len(pr) > 6: o.pth = pr[6].replace("/", ",")
        emit_body("_b")
    else:
        emit_body("")
    e("L_fin:")
    if o.stamp:
        e("s_waitcnt vmcnt(0)")
        e("s_memrealtime s[52:53]")
        e("s_memtime s[54:55]")
        e("s_getreg_b32 s58, hwreg(HW_REG_XCC_ID)")
        e("s_getreg_b32 s59, hwreg(HW_REG_HW_ID)")
        e("s_waitcnt lgkmcnt(0)")
        e("s_lshl_b32 s60, s2, 2")
        e(f"s_add_u32 s60, s60, {sW}")
        e("s_lshl_b32 s60, s60, 5")
        e("v_mov_b32 v0, s48"); e("v_mov_b32 v1, s50"); e("v_mov_b32 v2, s52"); e("v_mov_b32 v3, s54")
        e("v_mov_b32 v4, s58"); e("v_mov_b32 v5, s59"); e("v_mov_b32 v6, s61"); e("v_mov_b32 v7, s62")
        e("v_mov_b32 v8, s60")
        e("global_store_dwordx4 v8, v[0:3], s[56:57]")
        e("global_store_dwordx4 v8, v[4:7], s[56:57] offset:16")
        if o.trace:
            e("v_mbcnt_lo_u32_b32 v9, -1, 0")
            e("v_mbcnt_hi_u32_b32 v9, -1, v9")
            e("s_lshl_b32 s60, s60, 3")
            e("s_add_u32 s60, s60, 0x200000")
            e("v_lshl_add_u32 v9, v9, 2, s60")
            e(f"global_store_dword v9, v{TM[2]}, s[56:57]")
    e("L_end:")
    e("s_endpgm")
    L.append('.section .rodata,"a"')
    L.append(".p2align 6")
    L.append(f".amdhsa_kernel {o.name}_kernel")
    L.append("  .amdhsa_next_free_vgpr 256")
    L.append(f"  .amdhsa_next_free_sgpr {96 if o.stamp else 48}")
    L.append("  .amdhsa_accum_offset 256")
    L.append("  .amdhsa_group_segment_fixed_size 0")
    L.append("  .amdhsa_kernarg_size 48")
    L.append("  .amdhsa_user_sgpr_count 2")
    L.append("  .amdhsa_user_sgpr_kernarg_segment_ptr 1")
    L.append("  .amdhsa_system_sgpr_workgroup_id_x 1")
    L.append(".end_amdhsa_kernel")
    return "\n".join(L) + "\n"

if __name__ == "__main__":
    o = Opt()
    out = sys.argv[1]
    for a in sys.argv[2:]:
        k, v = a.split("=")
        cur = getattr(o, k)
        setattr(o, k, (v in ("1", "True", "true")) if isinstance(cur, bool) else type(cur)(v))
    txt = gen(o)
    open(out, "w").write(txt)
    b, n = hazard.check(txt)
    print(f"{out}: {n} instrs, {b} hazards")
```

```python
import sys, math, struct
import hazard

def f2u(x):
    return struct.unpack("<I", struct.pack("<f", x))[0]

class Opt:
    ldpol = "nt"
    stpol = "sc1"
    nh = 2
    nwg = 0
    prio = 1
    stamp = False
    trace = False
    nanfill = False
    wpair = True
    kbud = 8
    vbud = 9
    maxnop = 1
    nf = 4
    psl = True
    deep = False
    kdma = -1
    vdma = -1
    pth = '4,8,12'
    skip0 = True
    q5 = True
    early = False
    ladd = False
    xhold = 99
    nodma = False
    name = "standalone__gqa_softmax__near_ridge"

def cost(s):
    if s.startswith("v_exp") or s.startswith("v_rcp"): return 8
    return 4

def gen(o):
    L = []
    def e(s=""):
        L.append("    " + s if s and not s.endswith(":") else s)
    nwg = o.nwg or 1024 // o.nh
    SLOT = 16384; LDS = 5 * SLOT
    ntl = (" " + o.ldpol.replace("_", " ")) if o.ldpol not in ("", "none") else ""
    nts = (" " + o.stpol.replace("_", " ")) if o.stpol not in ("", "none") else ""
    NF = o.nf
    def O(T, qt): return (T * 3 + qt) * 4
    def LA(qt): return 96 + qt * 4
    def Q(qt, ks): return 108 + (qt * 4 + ks) * 4
    def S(kt, qt): return 156 + (kt * 3 + qt) * 4
    ONES = 204
    def CI(qt): return 208 + qt * 4
    def F(i): return 220 + (i % NF) * 4
    b0 = 220 + NF * 4
    DK, DV = b0, b0 + 1
    KA = [b0 + 2 + i for i in range(4)]
    VA = [b0 + 6 + i for i in range(8)]
    TM = [b0 + 14 + i for i in range(3)]
    assert TM[-1] < 256
    def r4(b): return f"v[{b}:{b+3}]"
    def r2(b): return f"v[{b}:{b+1}]"
    SQ, SK, SV, SO = "s[4:7]", "s[8:11]", "s[12:15]", "s[16:19]"
    sW, sW4K, sK, sV, sIT, sH = "s20", "s21", "s22", "s23", "s24", "s25"
    sKV, sKVN, sQN, sOO, sC, sT0, sT1 = "s26", "s27", "s28", "s29", "s30", "s33", "s34"
    sM = "s[38:39]"; sMASK = "s41"; sSO = "s42"
    OOB = 0x40000000
    NQ, NK = 50331648, 134217728
    MF = "v_mfma_f32_16x16x32_bf16"
    uid = [0]
    def lab(p):
        uid[0] += 1
        return f"L_{p}_{uid[0]}"
    tail = []

    L.append(f"; @launch grid=({nwg},1,1) block=(256,1,1) lds={LDS}")
    L.append('.amdgcn_target "amdgcn-amd-amdhsa--gfx950"')
    L.append(".text")
    L.append(f".globl {o.name}_kernel")
    L.append(".p2align 8")
    L.append(f".type {o.name}_kernel,@function")
    L.append(f"{o.name}_kernel:")
    e(f"s_cmp_ge_u32 s2, {nwg}")
    e("s_cbranch_scc1 L_end")
    if o.stamp:
        e("s_memrealtime s[48:49]")
        e("s_memtime s[50:51]")
        e("s_load_dwordx2 s[56:57], s[0:1], 40")
    e("s_load_dwordx4 s[36:39], s[0:1], 0")
    e("s_load_dwordx4 s[40:43], s[0:1], 16")
    e("v_and_b32 v9, 63, v0")
    e("v_lshrrev_b32 v1, 6, v0")
    e("v_and_b32 v2, 15, v9")
    e(f"v_readfirstlane_b32 {sW}, v1")
    e("v_lshrrev_b32 v3, 4, v9")
    e("v_lshrrev_b32 v4, 2, v2")
    e("v_and_b32 v5, 3, v2")
    e(f"s_lshl_b32 {sW4K}, {sW}, 12")
    e(f"s_lshl_b32 {sT0}, {sW}, 2")
    e("v_lshlrev_b32 v6, 8, v3")
    e(f"v_add_u32 v6, {sW4K}, v6")
    e(f"v_add_u32 v7, {sT0}, v3")
    e("v_xor_b32 v7, v7, v2")
    e(f"v_lshl_add_u32 v{DK}, v7, 4, v6")
    e(f"s_mul_i32 {sT0}, s2, {o.nh}")
    e(f"s_lshl_b32 {sKVN}, {sT0}, 17")
    e(f"s_mul_i32 {sQN}, {sT0}, 49152")
    e(f"s_mov_b32 m0, {sW4K}")
    e(f"s_add_u32 {sT0}, {sQN}, {SLOT}")
    e(f"s_add_u32 {sT1}, {sQN}, {2*SLOT}")
    e("s_mov_b32 s6, " + str(NQ))
    e("s_mov_b32 s7, 0x20000")
    e("s_waitcnt lgkmcnt(0)")
    e("s_mov_b32 s4, s36")
    e("s_and_b32 s5, s37, 0xffff")
    def dma1(srd, soff, voff, j):
        off = f" offset:{1024*j}" if j else ""
        return f"buffer_load_dwordx4 v{voff}, {srd}, {soff} offen{off}{ntl} lds"
    def dma(srd, soff, voff):
        for j in range(4): e(dma1(srd, soff, voff, j))
    dma(SQ, sQN, DK)
    e(f"s_add_u32 m0, {sW4K}, {2*SLOT}")
    e("s_mov_b32 s8, s38")
    dma(SQ, sT0, DK)
    e(f"s_add_u32 m0, {sW4K}, {4*SLOT}")
    e("s_and_b32 s9, s39, 0xffff")
    dma(SQ, sT1, DK)
    e(f"s_mov_b32 s10, {NK}"); e("s_mov_b32 s11, 0x20000")
    for (b, p, n) in ((12, 40, NK), (16, 42, NQ)):
        e(f"s_mov_b32 s{b}, s{p}")
        e(f"s_and_b32 s{b+1}, s{p+1}, 0xffff")
        e(f"s_mov_b32 s{b+2}, {n}")
        e(f"s_mov_b32 s{b+3}, 0x20000")
    e(f"s_and_b32 {sT0}, {sW}, 1")
    e(f"s_lshl_b32 {sT0}, {sT0}, 2")
    e(f"v_add_u32 v7, {sT0}, v3")
    e("v_lshlrev_b32 v7, 1, v7")
    e("v_xor_b32 v7, v7, v2")
    e(f"v_lshl_add_u32 v{DV}, v7, 4, v6")
    e("v_lshlrev_b32 v6, 12, v4")
    e("v_lshl_add_u32 v6, v5, 8, v6")
    e("v_xor_b32 v7, v3, v2")
    e(f"v_lshl_add_u32 v{KA[0]}, v7, 4, v6")
    for ks in range(1, 4): e(f"v_xor_b32 v{KA[ks]}, {ks<<6}, v{KA[0]}")
    e("v_lshlrev_b32 v6, 12, v3")
    e("v_lshl_add_u32 v6, v4, 8, v6")
    e("v_and_b32 v7, 1, v3")
    e("v_lshl_add_u32 v7, v7, 2, v4")
    e("v_lshlrev_b32 v7, 1, v7")
    e("v_lshrrev_b32 v8, 1, v5")
    e("v_xor_b32 v7, v7, v8")
    e("v_lshl_add_u32 v6, v7, 4, v6")
    e("v_and_b32 v8, 1, v2")
    e("v_lshl_add_u32 v6, v8, 3, v6")
    e(f"v_add_u32 v{VA[0]}, {3*SLOT}, v6")
    for T in range(1, 8): e(f"v_xor_b32 v{VA[T]}, {T<<5}, v{VA[0]}")
    for i in range(4): e(f"v_mov_b32 v{ONES+i}, 0x3f803f80")
    e(f"s_add_u32 {sK}, {sW4K}, {SLOT}")
    e(f"s_add_u32 {sV}, {sW4K}, {3*SLOT}")
    e(f"s_mov_b32 {sC}, {hex(f2u(math.log2(math.e) / math.sqrt(128.0)))}")
    e(f"s_mov_b32 {sMASK}, 0x40004000")
    e(f"s_mov_b32 {sH}, 0")
    e(f"s_mov_b32 {sOO}, {OOB}")
    if o.stamp:
        e("s_mov_b32 s61, 0"); e("s_mov_b32 s62, 0")
    if o.prio == 1:
        e("s_setprio 3"); e("s_mov_b32 s31, 0"); e(f"s_mov_b32 s32, {o.pth.split(',')[0]}")
    if o.nanfill:
        for i in range(108): e(f"v_mov_b32 v{i}, 0x7fc00000")
    def tr():
        if not o.trace: return []
        return ["s_memrealtime s[66:67]", "s_memtime s[68:69]", "s_waitcnt lgkmcnt(0)", "s_mov_b32 s71, m0", "s_mov_b32 m0, s70", "s_nop 0",
                f"v_writelane_b32 v{TM[2]}, s66, m0", "s_add_u32 m0, s70, 32", "s_nop 0", f"v_writelane_b32 v{TM[2]}, s68, m0", "s_mov_b32 m0, s71", "s_add_u32 s70, s70, 1"]
    if o.trace:
        e("s_mov_b32 s70, 0")
        e(f"v_mov_b32 v{TM[2]}, 0")

    def allreduce(op, x, t):
        for a, b in zip(x, t): e(f"v_mov_b32 v{b}, v{a}")
        e("s_nop 1")
        for a, b in zip(x, t): e(f"v_permlane16_swap_b32 v{a}, v{b}")
        for a, b in zip(x, t): e(f"{op} v{a}, v{a}, v{b}")
        for a, b in zip(x, t): e(f"v_mov_b32 v{b}, v{a}")
        e("s_nop 1")
        for a, b in zip(x, t): e(f"v_permlane32_swap_b32 v{a}, v{b}")
        for a, b in zip(x, t): e(f"{op} v{a}, v{a}, v{b}")

    class LQ:
        def __init__(s, pre=()): s.q = list(pre)
        def read(s, tag): s.q.append(tag); assert len(s.q) <= 15, s.q
        def wait(s, tag):
            if tag not in s.q: return None
            i = len(s.q) - 1 - s.q[::-1].index(tag)
            n = len(s.q) - 1 - i
            s.q = s.q[i + 1:]
            return f"s_waitcnt lgkmcnt({n})"
    def short(text):
        c = hazard.I(text, 0); d = 0; miss = 0
        for ln in reversed(L):
            t = ln.strip()
            if t.endswith(":"): continue
            if t.startswith("s_branch") or t.startswith("s_endpgm") or d >= 13: break
            p = hazard.I(t, 0)
            miss = max(miss, hazard.need(p, c) - d)
            d += p.states
        return miss
    def safe_e(x):
        m = short(x)
        if m > 0: e(f"s_nop {m-1}")
        e(x)
    def weave(spine, fillers, bud, lq):
        q = list(fillers); j = -1; credit = 0
        for s in spine:
            if s[0] == "r": lq.read(s[1]); e(s[2]); continue
            if s[0] == "x":
                for x in s[1]: e(x)
                if o.trace and any("lgkmcnt(0)" in x for x in s[1]): lq.q = []
                continue
            if s[0] == "w":
                w = lq.wait(s[1])
                if w: e(w)
                continue
            dl = [i for i, x in enumerate(q) if x[1] == "DEADLINE" and x[0] <= j + 1]
            if dl:
                for _, ins in q[:dl[-1] + 1]:
                    if ins == "DEADLINE": continue
                    for x in (ins if isinstance(ins, list) else [ins]): safe_e(x)
                q = q[dl[-1] + 1:]
            safe_e(s[1])
            j += 1
            credit += bud
            while q and (q[0][0] <= j or q[0][1] == "DEADLINE") and credit > 0:
                if q[0][1] == "DEADLINE": q.pop(0); continue
                ins = q[0][1] if isinstance(q[0][1], list) else [q[0][1]]
                if short(ins[0]) > o.maxnop: break
                q.pop(0)
                for x in ins:
                    safe_e(x); credit -= cost(x)
            credit = min(credit, bud)
        for _, ins in q:
            if ins == "DEADLINE": continue
            for x in (ins if isinstance(ins, list) else [ins]): safe_e(x)

    def kread(f):
        kt, ks = f >> 2, f & 3
        off = f" offset:{kt*1024}" if kt else ""
        return [("r", f"K{f}", f"ds_read_b128 {r4(F(f))}, v{KA[ks]}{off}")]
    def vread(f):
        u, T = f >> 3, f & 7
        r = []
        for ee in range(2):
            off = 2048 * u + 1024 * ee
            offs = f" offset:{off}" if off else ""
            r.append(("r", f"V{f}", f"ds_read_b64_tr_b16 {r2(F(f)+2*ee)}, v{VA[T]}{offs}"))
        return r
    KTAGS = [f"K{f}" for f in range(NF)]
    VTAGS = [f"V{f}" for f in range(NF) for _ in range(2)]
    def emit_reads(lst):
        for x in lst: e(x[2])
    def phase(n, group, own, nxt, sync, late=None):
        sp = []
        for f in range(16):
            if not o.wpair: sp.append(("w", f"{n}{f}"))
            elif f % 2 == 0: sp.append(("w", f"{n}{f+1}"))
            sp += group(f)
            if f + NF < 16: sp += own(f + NF)
            if late and f == late[0]: sp.append(("x", late[1]))
            if nxt and o.early:
                if f == 12: sp.append(("x", sync))
                if f >= 12: sp += nxt(f - 12)
                if f == 15:
                    for j in range(4, NF): sp += nxt(j)
        return sp
    def kgroup_(init):
        def g(f):
            kt, ks = f >> 2, f & 3
            return [("m", f"{MF} {r4(S(kt,qt))}, {r4(F(f))}, {r4(Q(qt,ks))}, {(r4(CI(qt)) if init else '0') if ks == 0 else r4(S(kt, qt))}") for qt in range(3)]
        return g
    kgroup = kgroup_(False); kgroup_i = kgroup_(True)
    def vgroup(zero):
        def g(f):
            u, T = f >> 3, f & 7
            return [("m", f"{MF} {r4(O(T,qt))}, {r4(F(f))}, {r4(S(2*u,qt))}, {'0' if zero and u == 0 else r4(O(T,qt))}") for qt in range(3)]
        return g
    def fma(kt, qt): return [f"v_add_f32 v{S(kt,qt)+i}, v{S(kt,qt)+i}, v{CI(qt)}" for i in range(4)]
    def exp(kt, qt): return [f"v_exp_f32 v{S(kt,qt)+i}, v{S(kt,qt)+i}" for i in range(4)]
    def cvt(kt, qt):
        b = S(kt & ~1, qt) + 2 * (kt & 1); s = S(kt, qt)
        return [f"v_cvt_pk_bf16_f32 v{b}, v{s}, v{s+1}", f"v_cvt_pk_bf16_f32 v{b+1}, v{s+2}, v{s+3}"]
    def lsum0(kt, qt):
        b = S(kt, qt); t = LA(qt) + 1
        if not o.ladd: return []
        if kt == 0: return [f"v_add_f32 v{t}, v{b}, v{b+1}", f"v_add_f32 v{t}, v{t}, v{b+2}", f"v_add_f32 v{t}, v{t}, v{b+3}"]
        return [f"v_add_f32 v{t}, v{t}, v{b+i}" for i in range(4)]
    def lsum1(kt, qt):
        b = S(kt, qt); t = LA(qt) + (kt & 1)
        return [f"v_add_f32 v{t}, v{t}, v{b+i}" for i in range(4)] if o.ladd else []
    def vsync(vm, part="all"):
        sp_l = lab("vr"); back = lab("vb")
        h = [f"s_mov_b32 m0, {sV}", f"s_xor_b32 {sV}, {sV}, {SLOT}", f"s_lshl_b32 {sSO}, {sIT}, 14", f"s_add_u32 {sSO}, {sSO}, {sKV}"]
        h += [f"s_cmp_eq_u32 {sIT}, 7"] if part == "all" else []
        if o.deep and vm == 4:
            w1, wb = lab("vw"), lab("vwb")
            h = h[:4] + [f"s_cmp_eq_u32 {sIT}, 1", f"s_cbranch_scc1 {w1}", "s_waitcnt vmcnt(4)", f"{wb}:"] + h[4:]
            tail.append([f"{w1}:", "s_waitcnt vmcnt(16)", f"s_branch {wb}"])
        else: h += [f"s_waitcnt vmcnt({vm})"]
        h += ["s_barrier"] + ([] if o.early else [x[2] for f in range(NF) for x in vread(f)]) + tr()
        if part == "head": return h
        r = ([f"s_cmp_eq_u32 {sIT}, 7"] if o.trace or part == "refill" else []) + [f"s_cbranch_scc1 {sp_l}"]
        if not o.nodma: r += [dma1(SV, sSO, DV, j) for j in range(4)]
        r += [f"{back}:"]
        tail.append([f"{sp_l}:", f"s_add_u32 {sT0}, {sQN}, {SLOT}"] + [dma1(SQ, sT0, DK, j) for j in range(4)]
                    + [f"s_add_u32 m0, {sW4K}, {4*SLOT}", f"s_add_u32 {sT0}, {sQN}, {2*SLOT}"] + [dma1(SQ, sT0, DK, j) for j in range(4)] + [f"s_branch {back}"])
        return r if part == "refill" else h + r
    def ksync(part="all"):
        sp_l = lab("kr"); back = lab("kb")
        h = [f"s_cmp_eq_u32 {sIT}, 8", f"s_cbranch_scc1 {back}"] if o.early else []
        h += [f"s_mov_b32 m0, {sK}", f"s_xor_b32 {sK}, {sK}, {SLOT}", f"s_lshl_b32 {sSO}, {sIT}, 14", f"s_add_u32 {sSO}, {sSO}, {sKV}"]
        h += [f"s_cmp_eq_u32 {sIT}, 7"] if part == "all" else []
        if part == "refill": pass
        elif o.deep:
            w1, wb = lab("kw"), lab("kwb")
            h = h[:-1 if part == "all" else None] + [f"s_cmp_eq_u32 {sIT}, 1", f"s_cbranch_scc1 {w1}", "s_waitcnt vmcnt(4)", f"{wb}:"] + (h[-1:] if part == "all" else [])
            tail.append([f"{w1}:", "s_waitcnt vmcnt(16)", f"s_branch {wb}"])
        else: h += ["s_waitcnt vmcnt(4)"]
        h += ["s_barrier"] + ([] if o.early else [x[2] for f in range(NF) for x in kread(f)]) + tr()
        if part == "head": return h
        r = ([f"s_cmp_eq_u32 {sIT}, 7"] if o.trace or part == "refill" else []) + [f"s_cbranch_scc1 {sp_l}"]
        if not o.nodma: r += [dma1(SK, sSO, DK, j) for j in range(4)]
        r += [f"{back}:"]
        if o.trace and o.early: r += ["s_waitcnt lgkmcnt(0)"]
        tail.append([f"{sp_l}:"] + [dma1(SQ, sQN, DK, j) for j in range(4)] + [f"s_branch {back}"])
        return r if part == "refill" else h + r

    e("L_head:")
    X = [S(0, 0) + i for i in range(16)]
    AX = [S(2, 0) + i for i in range(12)]
    e(f"v_mbcnt_lo_u32_b32 v{X[8]}, -1, 0")
    e(f"v_mbcnt_hi_u32_b32 v{X[8]}, -1, v{X[8]}")
    e(f"v_and_b32 v{X[0]}, 15, v{X[8]}")
    e(f"v_lshrrev_b32 v{X[1]}, 4, v{X[8]}")
    e(f"v_lshlrev_b32 v{X[3]}, 8, v{X[0]}")
    e(f"s_lshl_b32 {sT0}, {sW}, 2")
    e(f"v_and_b32 v{X[2]}, 3, v{X[0]}")
    e(f"v_add_u32 v{X[2]}, {sT0}, v{X[2]}")
    e(f"v_xor_b32 v{X[2]}, v{X[2]}, v{X[1]}")
    e(f"v_lshl_add_u32 v{X[9]}, v{X[2]}, 4, v{X[3]}")
    e(f"v_add_u32 v{X[9]}, {sW4K}, v{X[9]}")
    for ks in range(1, 4): e(f"v_xor_b32 v{AX[ks]}, {ks<<6}, v{X[9]}")
    e(f"s_cmp_eq_u32 {sH}, {o.nh}")
    e("s_cbranch_scc1 L_last")
    tail.append(["L_last:", "s_waitcnt vmcnt(0)", "s_branch L_oproc"])
    if o.deep: e("s_barrier")
    for j in range(3):
        qpos = [0, 2, 4][j]
        if j == 2:
            for a in [X[9]] + AX[1:4]: e(f"v_add_u32 v{a}, {4*SLOT}, v{a}")
        e("s_waitcnt vmcnt(8)")
        for ks in range(4): e(f"ds_read_b128 {r4(Q(j,ks))}, v{X[9] if ks == 0 else AX[ks]} offset:{(qpos & 3)*SLOT}")
        if j < 2:
            e(f"s_add_u32 m0, {sW4K}, {qpos*SLOT}")
            e("s_waitcnt lgkmcnt(0)")
            dma(SK if j == 0 else SV, sKVN, DK if j == 0 else DV)
        else:
            if o.deep:
                e(f"s_add_u32 m0, {sW4K}, {SLOT}")
                e(f"s_add_u32 {sT0}, {sKVN}, {SLOT}")
                dma(SK, sT0, DK)
                e(f"s_add_u32 m0, {sW4K}, {3*SLOT}")
                e("s_nop 0")
                dma(SV, sT0, DV)
            e("s_waitcnt lgkmcnt(0)")
        for r in (range(48) if j == 2 else []) if o.psl else range(16 * j, 16 * j + 16):
            q = Q(0, 0) + r; t0 = CI(0) + 2 * (r % 3); t1 = t0 + 1
            e(f"v_lshlrev_b32 v{t0}, 16, v{q}")
            e(f"v_and_b32 v{t1}, 0xffff0000, v{q}")
            e(f"v_mul_f32 v{t0}, {sC}, v{t0}")
            e(f"v_mul_f32 v{t1}, {sC}, v{t1}")
            e(f"v_cvt_pk_bf16_f32 v{q}, v{t0}, v{t1}")
    if o.skip0:
        e(f"s_cmp_eq_u32 {sH}, 0")
        e("s_cbranch_scc1 L_first")
        tail.append(["L_first:"] + [f"buffer_store_dwordx4 {r4(F(0))}, v{X[9]}, {SO}, {sOO} offen{nts}"] * 12 + ["s_branch L_ohead"])
    e("L_oproc:")
    if o.ladd: allreduce("v_add_f32", [LA(j) for j in range(3)], [LA(j) + 1 for j in range(3)])
    for j in range(3): e(f"v_rcp_f32 v{X[13+j]}, v{LA(j)}")
    e(f"s_add_u32 {sT1}, {sW4K}, {4*SLOT}")
    e(f"v_lshrrev_b32 v{X[2]}, 1, v{X[1]}")
    e(f"v_xor_b32 v{X[2]}, v{X[2]}, v{X[0]}")
    e(f"v_lshl_add_u32 v{X[2]}, v{X[2]}, 4, v{X[3]}")
    e(f"v_and_b32 v{X[5]}, 1, v{X[1]}")
    e(f"v_lshl_add_u32 v{X[6]}, v{X[5]}, 3, v{X[2]}")
    e(f"v_add_u32 v{AX[4]}, {sT1}, v{X[6]}")
    for T in range(1, 8): e(f"v_xor_b32 v{AX[4+T]}, {T<<5}, v{AX[4]}")
    e(f"v_xor_b32 v{X[2]}, v{X[0]}, v{X[1]}")
    e(f"v_lshlrev_b32 v{X[2]}, 4, v{X[2]}")
    e(f"v_lshl_add_u32 v{X[7]}, v{X[1]}, 8, v{X[2]}")
    e(f"v_add_u32 v{AX[0]}, {sT1}, v{X[7]}")
    for jj in range(1, 4): e(f"v_xor_b32 v{AX[jj]}, {jj<<6}, v{AX[0]}")
    e(f"v_lshlrev_b32 v{X[12]}, 4, v{X[8]}")
    e(f"v_add_u32 v{X[12]}, {sW4K}, v{X[12]}")
    RB = [[F(jj) for jj in range(4)], [S(1,1), S(1,2), S(3,0), S(3,1)], [F(jj) for jj in range(4)]]
    def norm(j):
        for T in range(8):
            b = O(T, j)
            for i in range(4): e(f"v_mul_f32 v{b+i}, v{b+i}, v{X[13+j]}")
        for T in range(8):
            b = O(T, j)
            e(f"v_cvt_pk_bf16_f32 v{b}, v{b}, v{b+1}")
            e(f"v_cvt_pk_bf16_f32 v{b+1}, v{b+2}, v{b+3}")
    def stage(j):
        for T in range(8): e(f"ds_write_b64 v{AX[4+T]}, {r2(O(T, j))}")
        for jj in range(4): e(f"ds_read_b128 {r4(RB[j][jj])}, v{AX[jj]} offset:{jj*1024}")
    def store(j):
        e(f"s_add_u32 {sT0}, {sOO}, {j*SLOT}")
        for jj in range(4):
            e(f"s_waitcnt lgkmcnt({3-jj})")
            e(f"buffer_store_dwordx4 {r4(RB[j][jj])}, v{X[12]}, {SO}, {sT0} offen offset:{jj*1024}{nts}")
    norm(0); e("s_waitcnt lgkmcnt(0)"); stage(0); norm(1); store(0); stage(1); norm(2); store(1); stage(2); store(2)
    e(f"s_cmp_eq_u32 {sH}, {o.nh}")
    e("s_cbranch_scc1 L_fin")
    e("L_ohead:")
    e(f"s_mov_b32 {sOO}, {sQN}")
    e(f"s_add_u32 {sKV}, {sKVN}, {SLOT}")
    e(f"s_add_u32 {sH}, {sH}, 1")
    e(f"s_add_u32 {sKVN}, {sKVN}, 131072")
    e(f"s_add_u32 {sQN}, {sQN}, 49152")
    e(f"s_cmp_eq_u32 {sH}, {o.nh}")
    e(f"s_cselect_b32 {sKVN}, {OOB}, {sKVN}")
    e(f"s_cselect_b32 {sQN}, {OOB}, {sQN}")
    e(f"s_mov_b32 {sIT}, 0")
    if o.stamp:
        e("s_mov_b32 s61, s62")
        e("s_memrealtime s[62:63]")
        e("s_waitcnt lgkmcnt(0)")

    e(f"s_mov_b32 m0, {sK}")
    e(f"s_xor_b32 {sK}, {sK}, {SLOT}")
    for T in range(8): e(f"v_xor_b32 v{VA[T]}, {SLOT}, v{VA[T]}")
    e(f"s_waitcnt vmcnt({24 if o.deep else 16})")
    e("s_barrier")
    for x in tr(): e(x)
    for f in range(NF): emit_reads(kread(f))
    if not o.deep: dma(SK, sKV, DK)
    LM = [CI(qt) + 1 for qt in range(3)]; T1 = [CI(qt) + 2 for qt in range(3)]
    vals = [[S(kt, qt) + i for kt in range(4) for i in range(4)] for qt in range(3)]
    def rowmax():
        for qt in range(3):
            v = vals[qt]; safe_e(f"v_max3_f32 v{LM[qt]}, v{v[0]}, v{v[1]}, v{v[2]}")
        for k in range(6):
            for qt in range(3):
                v = vals[qt]; safe_e(f"v_max3_f32 v{LM[qt]}, v{LM[qt]}, v{v[3+2*k]}, v{v[4+2*k]}")
        for qt in range(3): safe_e(f"v_max_f32 v{LM[qt]}, v{LM[qt]}, v{vals[qt][15]}")
        allreduce("v_max_f32", LM, T1)
        for qt in range(3): e(f"v_sub_f32 v{LM[qt]}, 0xc0e00000, v{LM[qt]}")
    def spread():
        for qt in range(3):
            for i in (0, 2, 3): e(f"v_mov_b32 v{CI(qt)+i}, v{LM[qt]}")
    def half0():
        for qt in range(3):
            for kt in range(4):
                for s in fma(kt, qt): e(s)
        for qt in range(3):
            for kt in range(2):
                for s in exp(kt, qt): e(s)
        for qt in range(3):
            for kt in range(2):
                for s in lsum0(kt, qt): e(s)
        for qt in range(3):
            for kt in range(2):
                for s in cvt(kt, qt): e(s)
    def rescale():
        for qt in range(3): e(f"v_min_f32 v{LM[qt]}, v{LM[qt]}, v{CI(qt)}")
        for qt in range(3): e(f"v_sub_f32 v{T1[qt]}, v{LM[qt]}, v{CI(qt)}")
        for qt in range(3): e(f"v_exp_f32 v{T1[qt]}, v{T1[qt]}")
        e("s_nop 0")
        for qt in range(3):
            for i in range(1 if o.ladd else 4): e(f"v_mul_f32 v{LA(qt)+i}, v{LA(qt)+i}, v{T1[qt]}")
        for T in range(8):
            for qt in range(3):
                for i in range(4): e(f"v_mul_f32 v{O(T,qt)+i}, v{O(T,qt)+i}, v{T1[qt]}")
    weave(phase("K", kgroup, kread, vread, vsync(16) if o.early else None), [], 0, LQ(KTAGS))
    rowmax()
    spread()
    half0()

    sG, sTH = "s31", "s32"
    def prio_step():
        if o.prio != 1: return
        th = [int(x) for x in o.pth.split(",")]
        pl = lab("pp"); pb = lab("pb")
        e(f"s_add_u32 {sG}, {sG}, 1")
        e(f"s_cmp_eq_u32 {sG}, {sTH}")
        e(f"s_cbranch_scc1 {pl}")
        e(f"{pb}:")
        a, b = lab("pa"), lab("pa")
        tail.append([f"{pl}:", f"s_cmp_eq_u32 {sG}, {th[0]}", f"s_cbranch_scc1 {a}", f"s_cmp_eq_u32 {sG}, {th[1]}", f"s_cbranch_scc1 {b}",
                     "s_setprio 0", f"s_branch {pb}", f"{a}:", "s_setprio 2", f"s_mov_b32 {sTH}, {th[1]}", f"s_branch {pb}",
                     f"{b}:", "s_setprio 1", f"s_mov_b32 {sTH}, {th[2]}", f"s_branch {pb}"])
    def vstep(zero):
        def lm(u): return [("m", f"{MF} {r4(LA(qt))}, {r4(ONES)}, {r4(S(2*u,qt))}, {'0' if zero and u == 0 else r4(LA(qt))}") for qt in range(3)]
        assert not (o.deep and o.early)
        late = (o.vdma, vsync(0, "refill")) if o.vdma >= 0 and not (zero and o.deep) else None
        assert o.vdma < 9
        if o.ladd: sp = phase("V", vgroup(zero), vread, kread, ksync() if o.early else None, late); B = 24
        else: sp = lm(0) + phase("V", vgroup(zero), vread, kread, ksync() if o.early else None, late) + lm(1); B = 27
        if not o.early:
            for x in vsync((20 if o.deep else 16) if zero else 4, "head" if late or (zero and o.deep) else "all"): e(x)
        fl = []
        if o.ladd:
            for qt in range(3): fl.append((0, f"v_mov_b32 v{LA(qt)}, v{LA(qt)+1}" if zero else f"v_add_f32 v{LA(qt)}, v{LA(qt)}, v{LA(qt)+1}"))
        def l1(kt, qt):
            if not o.ladd: return []
            b = S(kt, qt)
            return [f"v_add_f32 v{LA(qt)}, v{LA(qt)}, v{b+i}" for i in range(4)]
        for lst in (exp(2,0), exp(3,0), l1(2,0), exp(2,1), cvt(2,0), exp(3,1), cvt(3,0), l1(2,1), exp(2,2), cvt(2,1), exp(3,2), cvt(3,1), l1(2,2), cvt(2,2), cvt(3,2)):
            for s in lst: fl.append((0, s))
        fl.append((B, "DEADLINE"))
        for qt in range(3):
            for s in l1(3, qt): fl.append((0, s))
        for ks in range(4): fl.append((B + ks, f"v_xor_b32 v{KA[ks]}, {SLOT}, v{KA[ks]}"))
        fl.append((B + 5, f"s_add_u32 {sIT}, {sIT}, 1"))
        fl.append((B + 12, "DEADLINE"))
        weave(sp, fl, o.vbud, LQ(VTAGS if not o.trace else []))
    vstep(True)
    prio_step()

    e("L_kfast:")
    klate = (o.kdma, ksync("refill")) if o.kdma >= 0 else None
    if not o.early:
        for x in ksync("head" if klate else "all"): e(x)
    fl = []
    for T in range(8): fl.append((3 + T, f"v_xor_b32 v{VA[T]}, {SLOT}, v{VA[T]}"))
    fl.append((36, "DEADLINE"))
    def add(pos, lst):
        for s in lst: fl.append((pos, s))
    def at(kt, qt): return 12 * kt + 9 + qt + 2
    add(at(0,0), exp(0,0)); add(at(0,1), exp(0,1)); add(0, lsum0(0,0)); add(0, cvt(0,0)); add(at(0,2), exp(0,2)); add(0, lsum0(0,1)); add(0, cvt(0,1))
    add(at(1,0), exp(1,0)); add(0, lsum0(0,2)); add(0, cvt(0,2)); add(at(1,1), exp(1,1)); add(0, lsum0(1,0)); add(0, cvt(1,0)); add(at(1,2), exp(1,2)); add(0, lsum0(1,1)); add(0, cvt(1,1))
    OR, MX = TM[0], TM[1]
    P0 = [S(0, qt) + i for qt in range(3) for i in range(4)]
    add(0, [f"v_or3_b32 v{OR}, v{P0[0]}, v{P0[1]}, v{P0[2]}", f"v_or3_b32 v{OR}, v{OR}, v{P0[3]}, v{P0[4]}"])
    add(0, lsum0(1,2)); add(0, cvt(1,2))
    add(0, [f"v_or3_b32 v{OR}, v{OR}, v{P0[5]}, v{P0[6]}", f"v_or3_b32 v{OR}, v{OR}, v{P0[7]}, v{P0[8]}", f"v_or3_b32 v{OR}, v{OR}, v{P0[9]}, v{P0[10]}"])
    add(0, [f"v_or_b32 v{OR}, v{OR}, v{P0[11]}"])
    x2 = [S(2, qt) + i for qt in range(3) for i in range(4)]
    x3 = [S(3, qt) + i for qt in range(3) for i in range(4)]
    add(at(2,0), [f"v_max3_f32 v{MX}, v{x2[0]}, v{x2[1]}, v{x2[2]}"])
    add(0, [f"v_and_b32 v{OR}, {sMASK}, v{OR}"])
    add(at(2,2), [f"v_max3_f32 v{MX}, v{MX}, v{x2[3]}, v{x2[4]}"])
    add(0, [f"v_cmp_ne_u32 {sM}, 0, v{OR}"])
    for k in range(1, 4): add(o.xhold, [f"v_max3_f32 v{MX}, v{MX}, v{x2[3+2*k]}, v{x2[4+2*k]}"])
    xs = [x2[11]] + x3
    for k in range(6): add(99, [f"v_max3_f32 v{MX}, v{MX}, v{xs[2*k]}, v{xs[2*k+1]}"])
    add(99, [f"v_max_f32 v{MX}, v{MX}, v{xs[12]}"])
    weave(phase("K", kgroup_i, kread, vread, vsync(4) if o.early else None, klate), fl, o.kbud, LQ(KTAGS if not o.trace else []))
    e(f"v_cmp_lt_f32 vcc, 1.0, v{MX}")
    e(f"s_or_b64 vcc, vcc, {sM}")
    if not o.nodma: e("s_cbranch_vccnz L_redo")
    e("L_vstep:")
    vstep(False)
    prio_step()
    e(f"s_cmp_lt_u32 {sIT}, 8")
    e("s_cbranch_scc1 L_kfast")
    e("s_waitcnt lgkmcnt(0)")
    e("s_branch L_head")

    e("L_redo:")
    e("s_waitcnt lgkmcnt(0)")
    for f in range(NF): emit_reads(kread(f))
    weave(phase("K", kgroup, kread, vread, []), [], 0, LQ(KTAGS))
    rowmax()
    rescale()
    spread()
    half0()
    e("s_branch L_vstep")
    for blk in tail:
        for s in blk: e(s)
    e("L_fin:")
    if o.stamp:
        e("s_waitcnt vmcnt(0)")
        e("s_memrealtime s[52:53]")
        e("s_memtime s[54:55]")
        e("s_getreg_b32 s58, hwreg(HW_REG_XCC_ID)")
        e("s_getreg_b32 s59, hwreg(HW_REG_HW_ID)")
        e("s_waitcnt lgkmcnt(0)")
        e("s_lshl_b32 s60, s2, 2")
        e(f"s_add_u32 s60, s60, {sW}")
        e("s_lshl_b32 s60, s60, 5")
        e("v_mov_b32 v0, s48"); e("v_mov_b32 v1, s50"); e("v_mov_b32 v2, s52"); e("v_mov_b32 v3, s54")
        e("v_mov_b32 v4, s58"); e("v_mov_b32 v5, s59"); e("v_mov_b32 v6, s61"); e("v_mov_b32 v7, s62")
        e("v_mov_b32 v8, s60")
        e("global_store_dwordx4 v8, v[0:3], s[56:57]")
        e("global_store_dwordx4 v8, v[4:7], s[56:57] offset:16")
        if o.trace:
            e("v_mbcnt_lo_u32_b32 v9, -1, 0")
            e("v_mbcnt_hi_u32_b32 v9, -1, v9")
            e("s_lshl_b32 s60, s60, 3")
            e("s_add_u32 s60, s60, 0x200000")
            e("v_lshl_add_u32 v9, v9, 2, s60")
            e(f"global_store_dword v9, v{TM[2]}, s[56:57]")
    e("L_end:")
    e("s_endpgm")
    L.append('.section .rodata,"a"')
    L.append(".p2align 6")
    L.append(f".amdhsa_kernel {o.name}_kernel")
    L.append("  .amdhsa_next_free_vgpr 256")
    L.append(f"  .amdhsa_next_free_sgpr {96 if o.stamp else 48}")
    L.append("  .amdhsa_accum_offset 256")
    L.append("  .amdhsa_group_segment_fixed_size 0")
    L.append("  .amdhsa_kernarg_size 48")
    L.append("  .amdhsa_user_sgpr_count 2")
    L.append("  .amdhsa_user_sgpr_kernarg_segment_ptr 1")
    L.append("  .amdhsa_system_sgpr_workgroup_id_x 1")
    L.append(".end_amdhsa_kernel")
    return "\n".join(L) + "\n"

if __name__ == "__main__":
    o = Opt()
    out = sys.argv[1]
    for a in sys.argv[2:]:
        k, v = a.split("=")
        cur = getattr(o, k)
        setattr(o, k, (v in ("1", "True", "true")) if isinstance(cur, bool) else type(cur)(v))
    txt = gen(o)
    open(out, "w").write(txt)
    b, n = hazard.check(txt)
    print(f"{out}: {n} instrs, {b} hazards")
```

```python
import sys, math, struct
import hazard

def f2u(x):
    return struct.unpack("<I", struct.pack("<f", x))[0]

class Opt:
    ldpol = "nt"
    stpol = "sc1"
    stpol2 = "sc1"
    nh = 2
    nwg = 0
    prio = 1
    stamp = False
    trace = False
    nanfill = False
    wpair = True
    kbud = 8
    vbud = 9
    maxnop = 1
    nf = 4
    odd = ''
    oddpar = 1
    seq = False
    xmap = 0
    psl = True
    deep = False
    kdma = -1
    vdma = -1
    pth = '4,8,12'
    skip0 = True
    q5 = True
    early = False
    ladd = False
    xhold = 99
    nodma = False
    name = "standalone__gqa_softmax__near_ridge"

def cost(s):
    if s.startswith("v_exp") or s.startswith("v_rcp"): return 8
    return 4

def gen(o):
    L = []
    def e(s=""):
        L.append("    " + s if s and not s.endswith(":") else s)
    nwg = o.nwg or 1024 // o.nh
    SLOT = 16384; LDS = 5 * SLOT
    ntl = (" " + o.ldpol.replace("_", " ")) if o.ldpol not in ("", "none") else ""
    nts = (" " + o.stpol.replace("_", " ")) if o.stpol not in ("", "none") else ""
    NF = o.nf
    def O(T, qt): return (T * 3 + qt) * 4
    def LA(qt): return 96 + qt * 4
    def Q(qt, ks): return 108 + (qt * 4 + ks) * 4
    def S(kt, qt): return 156 + (kt * 3 + qt) * 4
    ONES = 204
    def CI(qt): return 208 + qt * 4
    def F(i): return 220 + (i % NF) * 4
    b0 = 220 + NF * 4
    DK, DV = b0, b0 + 1
    KA = [b0 + 2 + i for i in range(4)]
    VA = [b0 + 6 + i for i in range(8)]
    TM = [b0 + 14 + i for i in range(3)]
    assert TM[-1] < 256
    def r4(b): return f"v[{b}:{b+3}]"
    def r2(b): return f"v[{b}:{b+1}]"
    SQ, SK, SV, SO = "s[4:7]", "s[8:11]", "s[12:15]", "s[16:19]"
    sW, sW4K, sK, sV, sIT, sH = "s20", "s21", "s22", "s23", "s24", "s25"
    sKV, sKVN, sQN, sOO, sC, sT0, sT1 = "s26", "s27", "s28", "s29", "s30", "s33", "s34"
    sM = "s[38:39]"; sMASK = "s41"; sSO = "s42"
    OOB = 0x40000000
    NQ, NK = 50331648, 134217728
    MF = "v_mfma_f32_16x16x32_bf16"
    uid = [0]
    def lab(p):
        uid[0] += 1
        return f"L_{p}_{uid[0]}"
    tail = []

    for ln in (
        "softmax(Q K^T / sqrt(128)) V, B=32 H=32 Sq=192 Sk=512 D=128, bf16 in / bf16 out (generated by the author's own script).",
        "kernarg: q, k, v, out, debug, ws (8 bytes each).",
        "512 workgroups x 4 waves, two per CU; each workgroup does two heads, each wave 48 query rows (three 16-row tiles).",
        "S^T = K Q^T and O^T = V^T P^T with v_mfma_f32_16x16x32_bf16, so a lane owns one query column throughout.",
        "LDS (80 KiB): 16 KiB slots K0 K1 V0 V1 filled by LDS-DMA two slots ahead (XOR-swizzled source addresses), one staging slot",
        "for the output; Q of the next head travels through the same slots.",
        "Softmax: log2(e)/sqrt(128) is folded into Q once per head; the first key tile uses the exact row max, later tiles reuse the",
        "running max and a per-tile check falls back to recomputing the tile with the true running max (L_redo) when any score",
        "exceeds it by more than 2^8; row sums come from an extra MFMA against a ones fragment.",
        ): L.append("; " + ln)
    L.append(f"; @launch grid=({nwg},1,1) block=(256,1,1) lds={LDS}")
    L.append('.amdgcn_target "amdgcn-amd-amdhsa--gfx950"')
    L.append(".text")
    L.append(f".globl {o.name}_kernel")
    L.append(".p2align 8")
    L.append(f".type {o.name}_kernel,@function")
    L.append(f"{o.name}_kernel:")
    e(f"s_cmp_ge_u32 s2, {nwg}")
    e("s_cbranch_scc1 L_end")
    if o.stamp:
        e("s_memrealtime s[48:49]")
        e("s_memtime s[50:51]")
        e("s_load_dwordx2 s[56:57], s[0:1], 40")
    e("s_load_dwordx4 s[36:39], s[0:1], 0")
    e("s_load_dwordx4 s[40:43], s[0:1], 16")
    e("v_and_b32 v9, 63, v0")
    e("v_lshrrev_b32 v1, 6, v0")
    e("v_and_b32 v2, 15, v9")
    e(f"v_readfirstlane_b32 {sW}, v1")
    e("v_lshrrev_b32 v3, 4, v9")
    e("v_lshrrev_b32 v4, 2, v2")
    e("v_and_b32 v5, 3, v2")
    e(f"s_lshl_b32 {sW4K}, {sW}, 12")
    e(f"s_lshl_b32 {sT0}, {sW}, 2")
    e("v_lshlrev_b32 v6, 8, v3")
    e(f"v_add_u32 v6, {sW4K}, v6")
    e(f"v_add_u32 v7, {sT0}, v3")
    e("v_xor_b32 v7, v7, v2")
    e(f"v_lshl_add_u32 v{DK}, v7, 4, v6")
    if o.xmap == 1:
        e(f"s_and_b32 {sT0}, s2, 7")
        e(f"s_lshl_b32 {sT0}, {sT0}, 6")
        e(f"s_lshr_b32 {sT1}, s2, 3")
        e(f"s_add_u32 {sT0}, {sT0}, {sT1}")
        e(f"s_lshl_b32 {sT0}, {sT0}, 1")
    else: e(f"s_mul_i32 {sT0}, s2, {o.nh}")
    e(f"s_lshl_b32 {sKVN}, {sT0}, 17")
    e(f"s_mul_i32 {sQN}, {sT0}, 49152")
    e(f"s_mov_b32 m0, {sW4K}")
    e(f"s_add_u32 {sT0}, {sQN}, {SLOT}")
    e(f"s_add_u32 {sT1}, {sQN}, {2*SLOT}")
    e("s_mov_b32 s6, " + str(NQ))
    e("s_mov_b32 s7, 0x20000")
    e("s_waitcnt lgkmcnt(0)")
    e("s_mov_b32 s4, s36")
    e("s_and_b32 s5, s37, 0xffff")
    def dma1(srd, soff, voff, j):
        off = f" offset:{1024*j}" if j else ""
        return f"buffer_load_dwordx4 v{voff}, {srd}, {soff} offen{off}{ntl} lds"
    def dma(srd, soff, voff):
        for j in range(4): e(dma1(srd, soff, voff, j))
    dma(SQ, sQN, DK)
    e(f"s_add_u32 m0, {sW4K}, {2*SLOT}")
    e("s_mov_b32 s8, s38")
    dma(SQ, sT0, DK)
    e(f"s_add_u32 m0, {sW4K}, {4*SLOT}")
    e("s_and_b32 s9, s39, 0xffff")
    dma(SQ, sT1, DK)
    e(f"s_mov_b32 s10, {NK}"); e("s_mov_b32 s11, 0x20000")
    for (b, p, n) in ((12, 40, NK), (16, 42, NQ)):
        e(f"s_mov_b32 s{b}, s{p}")
        e(f"s_and_b32 s{b+1}, s{p+1}, 0xffff")
        e(f"s_mov_b32 s{b+2}, {n}")
        e(f"s_mov_b32 s{b+3}, 0x20000")
    e(f"s_and_b32 {sT0}, {sW}, 1")
    e(f"s_lshl_b32 {sT0}, {sT0}, 2")
    e(f"v_add_u32 v7, {sT0}, v3")
    e("v_lshlrev_b32 v7, 1, v7")
    e("v_xor_b32 v7, v7, v2")
    e(f"v_lshl_add_u32 v{DV}, v7, 4, v6")
    e("v_lshlrev_b32 v6, 12, v4")
    e("v_lshl_add_u32 v6, v5, 8, v6")
    e("v_xor_b32 v7, v3, v2")
    e(f"v_lshl_add_u32 v{KA[0]}, v7, 4, v6")
    for ks in range(1, 4): e(f"v_xor_b32 v{KA[ks]}, {ks<<6}, v{KA[0]}")
    e("v_lshlrev_b32 v6, 12, v3")
    e("v_lshl_add_u32 v6, v4, 8, v6")
    e("v_and_b32 v7, 1, v3")
    e("v_lshl_add_u32 v7, v7, 2, v4")
    e("v_lshlrev_b32 v7, 1, v7")
    e("v_lshrrev_b32 v8, 1, v5")
    e("v_xor_b32 v7, v7, v8")
    e("v_lshl_add_u32 v6, v7, 4, v6")
    e("v_and_b32 v8, 1, v2")
    e("v_lshl_add_u32 v6, v8, 3, v6")
    e(f"v_add_u32 v{VA[0]}, {3*SLOT}, v6")
    for T in range(1, 8): e(f"v_xor_b32 v{VA[T]}, {T<<5}, v{VA[0]}")
    for i in range(4): e(f"v_mov_b32 v{ONES+i}, 0x3f803f80")
    e(f"s_add_u32 {sK}, {sW4K}, {SLOT}")
    e(f"s_add_u32 {sV}, {sW4K}, {3*SLOT}")
    e(f"s_mov_b32 {sC}, {hex(f2u(math.log2(math.e) / math.sqrt(128.0)))}")
    e(f"s_mov_b32 {sMASK}, 0x40004000")
    e(f"s_mov_b32 {sH}, 0")
    e(f"s_mov_b32 {sOO}, {OOB}")
    if o.stamp:
        e("s_mov_b32 s61, 0"); e("s_mov_b32 s62, 0")
    if o.prio == 1:
        e("s_setprio 3"); e("s_mov_b32 s31, 0"); e(f"s_mov_b32 s32, {o.pth.split(',')[0]}")
    if o.nanfill:
        for i in range(108): e(f"v_mov_b32 v{i}, 0x7fc00000")
    def tr():
        if not o.trace: return []
        return ["s_memrealtime s[66:67]", "s_memtime s[68:69]", "s_waitcnt lgkmcnt(0)", "s_mov_b32 s71, m0", "s_mov_b32 m0, s70", "s_nop 0",
                f"v_writelane_b32 v{TM[2]}, s66, m0", "s_add_u32 m0, s70, 32", "s_nop 0", f"v_writelane_b32 v{TM[2]}, s68, m0", "s_mov_b32 m0, s71", "s_add_u32 s70, s70, 1"]
    if o.trace:
        e("s_mov_b32 s70, 0")
        e(f"v_mov_b32 v{TM[2]}, 0")

    def allreduce(op, x, t):
        for a, b in zip(x, t): e(f"v_mov_b32 v{b}, v{a}")
        e("s_nop 1")
        for a, b in zip(x, t): e(f"v_permlane16_swap_b32 v{a}, v{b}")
        for a, b in zip(x, t): e(f"{op} v{a}, v{a}, v{b}")
        for a, b in zip(x, t): e(f"v_mov_b32 v{b}, v{a}")
        e("s_nop 1")
        for a, b in zip(x, t): e(f"v_permlane32_swap_b32 v{a}, v{b}")
        for a, b in zip(x, t): e(f"{op} v{a}, v{a}, v{b}")

    class LQ:
        def __init__(s, pre=()): s.q = list(pre)
        def read(s, tag): s.q.append(tag); assert len(s.q) <= 15, s.q
        def wait(s, tag):
            if tag not in s.q: return None
            i = len(s.q) - 1 - s.q[::-1].index(tag)
            n = len(s.q) - 1 - i
            s.q = s.q[i + 1:]
            return f"s_waitcnt lgkmcnt({n})"
    def short(text):
        c = hazard.I(text, 0); d = 0; miss = 0
        for ln in reversed(L):
            t = ln.strip()
            if t.endswith(":"): continue
            if t.startswith("s_branch") or t.startswith("s_endpgm") or d >= 13: break
            p = hazard.I(t, 0)
            miss = max(miss, hazard.need(p, c) - d)
            d += p.states
        return miss
    def safe_e(x):
        m = short(x)
        if m > 0: e(f"s_nop {m-1}")
        e(x)
    def weave(spine, fillers, bud, lq):
        q = list(fillers); j = -1; credit = 0
        for s in spine:
            if s[0] == "r": lq.read(s[1]); e(s[2]); continue
            if s[0] == "x":
                for x in s[1]: e(x)
                if o.trace and any("lgkmcnt(0)" in x for x in s[1]): lq.q = []
                continue
            if s[0] == "w":
                w = lq.wait(s[1])
                if w: e(w)
                continue
            dl = [i for i, x in enumerate(q) if x[1] == "DEADLINE" and x[0] <= j + 1]
            if dl:
                for _, ins in q[:dl[-1] + 1]:
                    if ins == "DEADLINE": continue
                    for x in (ins if isinstance(ins, list) else [ins]): safe_e(x)
                q = q[dl[-1] + 1:]
            safe_e(s[1])
            j += 1
            credit += bud
            while q and (q[0][0] <= j or q[0][1] == "DEADLINE") and credit > 0:
                if q[0][1] == "DEADLINE": q.pop(0); continue
                ins = q[0][1] if isinstance(q[0][1], list) else [q[0][1]]
                if short(ins[0]) > o.maxnop: break
                q.pop(0)
                for x in ins:
                    safe_e(x); credit -= cost(x)
            credit = min(credit, bud)
        for _, ins in q:
            if ins == "DEADLINE": continue
            for x in (ins if isinstance(ins, list) else [ins]): safe_e(x)

    def kread(f):
        kt, ks = f >> 2, f & 3
        off = f" offset:{kt*1024}" if kt else ""
        return [("r", f"K{f}", f"ds_read_b128 {r4(F(f))}, v{KA[ks]}{off}")]
    def vread(f):
        u, T = f >> 3, f & 7
        r = []
        for ee in range(2):
            off = 2048 * u + 1024 * ee
            offs = f" offset:{off}" if off else ""
            r.append(("r", f"V{f}", f"ds_read_b64_tr_b16 {r2(F(f)+2*ee)}, v{VA[T]}{offs}"))
        return r
    KTAGS = [f"K{f}" for f in range(NF)]
    VTAGS = [f"V{f}" for f in range(NF) for _ in range(2)]
    def emit_reads(lst):
        for x in lst: e(x[2])
    def phase(n, group, own, nxt, sync, late=None):
        sp = []
        for f in range(16):
            if not o.wpair: sp.append(("w", f"{n}{f}"))
            elif f % 2 == 0: sp.append(("w", f"{n}{f+1}"))
            sp += group(f)
            if f + NF < 16: sp += own(f + NF)
            if late and f == late[0]: sp.append(("x", late[1]))
            if nxt and o.early:
                if f == 12: sp.append(("x", sync))
                if f >= 12: sp += nxt(f - 12)
                if f == 15:
                    for j in range(4, NF): sp += nxt(j)
        return sp
    def kgroup_(init):
        def g(f):
            kt, ks = f >> 2, f & 3
            return [("m", f"{MF} {r4(S(kt,qt))}, {r4(F(f))}, {r4(Q(qt,ks))}, {(r4(CI(qt)) if init else '0') if ks == 0 else r4(S(kt, qt))}") for qt in range(3)]
        return g
    kgroup = kgroup_(False); kgroup_i = kgroup_(True)
    def vgroup(zero):
        def g(f):
            u, T = f >> 3, f & 7
            return [("m", f"{MF} {r4(O(T,qt))}, {r4(F(f))}, {r4(S(2*u,qt))}, {'0' if zero and u == 0 else r4(O(T,qt))}") for qt in range(3)]
        return g
    def fma(kt, qt): return [f"v_add_f32 v{S(kt,qt)+i}, v{S(kt,qt)+i}, v{CI(qt)}" for i in range(4)]
    def exp(kt, qt): return [f"v_exp_f32 v{S(kt,qt)+i}, v{S(kt,qt)+i}" for i in range(4)]
    def cvt(kt, qt):
        b = S(kt & ~1, qt) + 2 * (kt & 1); s = S(kt, qt)
        return [f"v_cvt_pk_bf16_f32 v{b}, v{s}, v{s+1}", f"v_cvt_pk_bf16_f32 v{b+1}, v{s+2}, v{s+3}"]
    def lsum0(kt, qt):
        b = S(kt, qt); t = LA(qt) + 1
        if not o.ladd: return []
        if kt == 0: return [f"v_add_f32 v{t}, v{b}, v{b+1}", f"v_add_f32 v{t}, v{t}, v{b+2}", f"v_add_f32 v{t}, v{t}, v{b+3}"]
        return [f"v_add_f32 v{t}, v{t}, v{b+i}" for i in range(4)]
    def lsum1(kt, qt):
        b = S(kt, qt); t = LA(qt) + (kt & 1)
        return [f"v_add_f32 v{t}, v{t}, v{b+i}" for i in range(4)] if o.ladd else []
    def vsync(vm, part="all"):
        sp_l = lab("vr"); back = lab("vb")
        h = [f"s_mov_b32 m0, {sV}", f"s_xor_b32 {sV}, {sV}, {SLOT}", f"s_lshl_b32 {sSO}, {sIT}, 14", f"s_add_u32 {sSO}, {sSO}, {sKV}"]
        h += [f"s_cmp_eq_u32 {sIT}, 7"] if part == "all" else []
        if o.deep and vm == 4:
            w1, wb = lab("vw"), lab("vwb")
            h = h[:4] + [f"s_cmp_eq_u32 {sIT}, 1", f"s_cbranch_scc1 {w1}", "s_waitcnt vmcnt(4)", f"{wb}:"] + h[4:]
            tail.append([f"{w1}:", "s_waitcnt vmcnt(16)", f"s_branch {wb}"])
        else: h += [f"s_waitcnt vmcnt({vm})"]
        h += ["s_barrier"] + ([] if o.early else [x[2] for f in range(NF) for x in vread(f)]) + tr()
        if part == "head": return h
        r = ([f"s_cmp_eq_u32 {sIT}, 7"] if o.trace or part == "refill" else []) + [f"s_cbranch_scc1 {sp_l}"]
        if not o.nodma: r += [dma1(SV, sSO, DV, j) for j in range(4)]
        r += [f"{back}:"]
        tail.append([f"{sp_l}:", f"s_add_u32 {sT0}, {sQN}, {SLOT}"] + [dma1(SQ, sT0, DK, j) for j in range(4)]
                    + [f"s_add_u32 m0, {sW4K}, {4*SLOT}", f"s_add_u32 {sT0}, {sQN}, {2*SLOT}"] + [dma1(SQ, sT0, DK, j) for j in range(4)] + [f"s_branch {back}"])
        return r if part == "refill" else h + r
    def ksync(part="all"):
        sp_l = lab("kr"); back = lab("kb")
        h = [f"s_cmp_eq_u32 {sIT}, 8", f"s_cbranch_scc1 {back}"] if o.early else []
        h += [f"s_mov_b32 m0, {sK}", f"s_xor_b32 {sK}, {sK}, {SLOT}", f"s_lshl_b32 {sSO}, {sIT}, 14", f"s_add_u32 {sSO}, {sSO}, {sKV}"]
        h += [f"s_cmp_eq_u32 {sIT}, 7"] if part == "all" else []
        if part == "refill": pass
        elif o.deep:
            w1, wb = lab("kw"), lab("kwb")
            h = h[:-1 if part == "all" else None] + [f"s_cmp_eq_u32 {sIT}, 1", f"s_cbranch_scc1 {w1}", "s_waitcnt vmcnt(4)", f"{wb}:"] + (h[-1:] if part == "all" else [])
            tail.append([f"{w1}:", "s_waitcnt vmcnt(16)", f"s_branch {wb}"])
        else: h += ["s_waitcnt vmcnt(4)"]
        h += ["s_barrier"] + ([] if o.early else [x[2] for f in range(NF) for x in kread(f)]) + tr()
        if part == "head": return h + ([f"{back}:"] + (["s_waitcnt lgkmcnt(0)"] if o.trace else []) if o.early else [])
        r = ([f"s_cmp_eq_u32 {sIT}, 7"] if o.trace or part == "refill" else []) + [f"s_cbranch_scc1 {sp_l}"]
        if not o.nodma: r += [dma1(SK, sSO, DK, j) for j in range(4)]
        r += [f"{back}:"]
        if o.trace and o.early and part == "all": r += ["s_waitcnt lgkmcnt(0)"]
        tail.append([f"{sp_l}:"] + [dma1(SQ, sQN, DK, j) for j in range(4)] + [f"s_branch {back}"])
        return r if part == "refill" else h + r

    def emit_body(sfx):
        del tail[:]
        e(f"L_head{sfx}:")
        X = [S(0, 0) + i for i in range(16)]
        AX = [S(2, 0) + i for i in range(12)]
        e(f"v_mbcnt_lo_u32_b32 v{X[8]}, -1, 0")
        e(f"v_mbcnt_hi_u32_b32 v{X[8]}, -1, v{X[8]}")
        e(f"v_and_b32 v{X[0]}, 15, v{X[8]}")
        e(f"v_lshrrev_b32 v{X[1]}, 4, v{X[8]}")
        e(f"v_lshlrev_b32 v{X[3]}, 8, v{X[0]}")
        e(f"s_lshl_b32 {sT0}, {sW}, 2")
        e(f"v_and_b32 v{X[2]}, 3, v{X[0]}")
        e(f"v_add_u32 v{X[2]}, {sT0}, v{X[2]}")
        e(f"v_xor_b32 v{X[2]}, v{X[2]}, v{X[1]}")
        e(f"v_lshl_add_u32 v{X[9]}, v{X[2]}, 4, v{X[3]}")
        e(f"v_add_u32 v{X[9]}, {sW4K}, v{X[9]}")
        for ks in range(1, 4): e(f"v_xor_b32 v{AX[ks]}, {ks<<6}, v{X[9]}")
        e(f"s_cmp_eq_u32 {sH}, {o.nh}")
        e(f"s_cbranch_scc1 L_last{sfx}")
        if o.deep: e("s_barrier")
        for j in range(3):
            qpos = [0, 2, 4][j]
            if j == 2:
                for a in [X[9]] + AX[1:4]: e(f"v_add_u32 v{a}, {4*SLOT}, v{a}")
            e("s_waitcnt vmcnt(8)")
            for ks in range(4): e(f"ds_read_b128 {r4(Q(j,ks))}, v{X[9] if ks == 0 else AX[ks]} offset:{(qpos & 3)*SLOT}")
            if j < 2:
                e(f"s_add_u32 m0, {sW4K}, {qpos*SLOT}")
                e("s_waitcnt lgkmcnt(0)")
                dma(SK if j == 0 else SV, sKVN, DK if j == 0 else DV)
            else:
                if o.deep:
                    e(f"s_add_u32 m0, {sW4K}, {SLOT}")
                    e(f"s_add_u32 {sT0}, {sKVN}, {SLOT}")
                    dma(SK, sT0, DK)
                    e(f"s_add_u32 m0, {sW4K}, {3*SLOT}")
                    e("s_nop 0")
                    dma(SV, sT0, DV)
                e("s_waitcnt lgkmcnt(0)")
            for r in (range(48) if j == 2 else []) if o.psl else range(16 * j, 16 * j + 16):
                q = Q(0, 0) + r; t0 = CI(0) + 2 * (r % 3); t1 = t0 + 1
                e(f"v_lshlrev_b32 v{t0}, 16, v{q}")
                e(f"v_and_b32 v{t1}, 0xffff0000, v{q}")
                e(f"v_mul_f32 v{t0}, {sC}, v{t0}")
                e(f"v_mul_f32 v{t1}, {sC}, v{t1}")
                e(f"v_cvt_pk_bf16_f32 v{q}, v{t0}, v{t1}")
        if o.skip0:
            e(f"s_cmp_eq_u32 {sH}, 0")
            e(f"s_cbranch_scc1 L_first{sfx}")
            tail.append([f"L_first{sfx}:"] + [f"buffer_store_dwordx4 {r4(F(0))}, v{X[9]}, {SO}, {sOO} offen{nts}"] * 12 + [f"s_branch L_ohead{sfx}"])
        def oproc(pol):
            if o.ladd: allreduce("v_add_f32", [LA(j) for j in range(3)], [LA(j) + 1 for j in range(3)])
            for j in range(3): e(f"v_rcp_f32 v{X[13+j]}, v{LA(j)}")
            e(f"s_add_u32 {sT1}, {sW4K}, {4*SLOT}")
            e(f"v_lshrrev_b32 v{X[2]}, 1, v{X[1]}")
            e(f"v_xor_b32 v{X[2]}, v{X[2]}, v{X[0]}")
            e(f"v_lshl_add_u32 v{X[2]}, v{X[2]}, 4, v{X[3]}")
            e(f"v_and_b32 v{X[5]}, 1, v{X[1]}")
            e(f"v_lshl_add_u32 v{X[6]}, v{X[5]}, 3, v{X[2]}")
            e(f"v_add_u32 v{AX[4]}, {sT1}, v{X[6]}")
            for T in range(1, 8): e(f"v_xor_b32 v{AX[4+T]}, {T<<5}, v{AX[4]}")
            e(f"v_xor_b32 v{X[2]}, v{X[0]}, v{X[1]}")
            e(f"v_lshlrev_b32 v{X[2]}, 4, v{X[2]}")
            e(f"v_lshl_add_u32 v{X[7]}, v{X[1]}, 8, v{X[2]}")
            e(f"v_add_u32 v{AX[0]}, {sT1}, v{X[7]}")
            for jj in range(1, 4): e(f"v_xor_b32 v{AX[jj]}, {jj<<6}, v{AX[0]}")
            e(f"v_lshlrev_b32 v{X[12]}, 4, v{X[8]}")
            e(f"v_add_u32 v{X[12]}, {sW4K}, v{X[12]}")
            RB = [[F(jj) for jj in range(4)], [S(1,1), S(1,2), S(3,0), S(3,1)], [F(jj) for jj in range(4)]]
            def norm(j):
                for T in range(8):
                    b = O(T, j)
                    for i in range(4): e(f"v_mul_f32 v{b+i}, v{b+i}, v{X[13+j]}")
                for T in range(8):
                    b = O(T, j)
                    e(f"v_cvt_pk_bf16_f32 v{b}, v{b}, v{b+1}")
                    e(f"v_cvt_pk_bf16_f32 v{b+1}, v{b+2}, v{b+3}")
            def stage(j):
                for T in range(8): e(f"ds_write_b64 v{AX[4+T]}, {r2(O(T, j))}")
                for jj in range(4): e(f"ds_read_b128 {r4(RB[j][jj])}, v{AX[jj]} offset:{jj*1024}")
            def store(j):
                e(f"s_add_u32 {sT0}, {sOO}, {j*SLOT}")
                for jj in range(4):
                    e(f"s_waitcnt lgkmcnt({3-jj})")
                    e(f"buffer_store_dwordx4 {r4(RB[j][jj])}, v{X[12]}, {SO}, {sT0} offen offset:{jj*1024}{pol}")
            norm(0); e("s_waitcnt lgkmcnt(0)"); stage(0); norm(1); store(0); stage(1); norm(2); store(1); stage(2); store(2)
        oproc(nts)
        e(f"L_ohead{sfx}:")
        e(f"s_mov_b32 {sOO}, {sQN}")
        e(f"s_add_u32 {sKV}, {sKVN}, {SLOT}")
        e(f"s_add_u32 {sH}, {sH}, 1")
        e(f"s_add_u32 {sKVN}, {sKVN}, 131072")
        e(f"s_add_u32 {sQN}, {sQN}, 49152")
        e(f"s_cmp_eq_u32 {sH}, {o.nh}")
        e(f"s_cselect_b32 {sKVN}, {OOB}, {sKVN}")
        e(f"s_cselect_b32 {sQN}, {OOB}, {sQN}")
        e(f"s_mov_b32 {sIT}, 0")
        if o.stamp:
            e("s_mov_b32 s61, s62")
            e("s_memrealtime s[62:63]")
            e("s_waitcnt lgkmcnt(0)")

        e(f"s_mov_b32 m0, {sK}")
        e(f"s_xor_b32 {sK}, {sK}, {SLOT}")
        for T in range(8): e(f"v_xor_b32 v{VA[T]}, {SLOT}, v{VA[T]}")
        e(f"s_waitcnt vmcnt({24 if o.deep else 16})")
        e("s_barrier")
        for x in tr(): e(x)
        for f in range(NF): emit_reads(kread(f))
        if not o.deep: dma(SK, sKV, DK)
        LM = [CI(qt) + 1 for qt in range(3)]; T1 = [CI(qt) + 2 for qt in range(3)]
        vals = [[S(kt, qt) + i for kt in range(4) for i in range(4)] for qt in range(3)]
        def rowmax():
            for qt in range(3):
                v = vals[qt]; safe_e(f"v_max3_f32 v{LM[qt]}, v{v[0]}, v{v[1]}, v{v[2]}")
            for k in range(6):
                for qt in range(3):
                    v = vals[qt]; safe_e(f"v_max3_f32 v{LM[qt]}, v{LM[qt]}, v{v[3+2*k]}, v{v[4+2*k]}")
            for qt in range(3): safe_e(f"v_max_f32 v{LM[qt]}, v{LM[qt]}, v{vals[qt][15]}")
            allreduce("v_max_f32", LM, T1)
            for qt in range(3): e(f"v_sub_f32 v{LM[qt]}, 0xc0e00000, v{LM[qt]}")
        def spread():
            for qt in range(3):
                for i in (0, 2, 3): e(f"v_mov_b32 v{CI(qt)+i}, v{LM[qt]}")
        def half0():
            for qt in range(3):
                for kt in range(4):
                    for s in fma(kt, qt): e(s)
            for qt in range(3):
                for kt in range(2):
                    for s in exp(kt, qt): e(s)
            for qt in range(3):
                for kt in range(2):
                    for s in lsum0(kt, qt): e(s)
            for qt in range(3):
                for kt in range(2):
                    for s in cvt(kt, qt): e(s)
        def rescale():
            for qt in range(3): e(f"v_min_f32 v{LM[qt]}, v{LM[qt]}, v{CI(qt)}")
            for qt in range(3): e(f"v_sub_f32 v{T1[qt]}, v{LM[qt]}, v{CI(qt)}")
            for qt in range(3): e(f"v_exp_f32 v{T1[qt]}, v{T1[qt]}")
            e("s_nop 0")
            for qt in range(3):
                for i in range(1 if o.ladd else 4): e(f"v_mul_f32 v{LA(qt)+i}, v{LA(qt)+i}, v{T1[qt]}")
            for T in range(8):
                for qt in range(3):
                    for i in range(4): e(f"v_mul_f32 v{O(T,qt)+i}, v{O(T,qt)+i}, v{T1[qt]}")
        weave(phase("K", kgroup, kread, vread, vsync(16, "head" if o.vdma >= 0 else "all") if o.early else None), [], 0, LQ(KTAGS))
        rowmax()
        spread()
        half0()

        sG, sTH = "s31", "s32"
        def prio_step():
            if o.prio != 1: return
            th = [int(x) for x in o.pth.split(",")]
            pl = lab("pp"); pb = lab("pb")
            e(f"s_add_u32 {sG}, {sG}, 1")
            e(f"s_cmp_eq_u32 {sG}, {sTH}")
            e(f"s_cbranch_scc1 {pl}")
            e(f"{pb}:")
            a, b = lab("pa"), lab("pa")
            tail.append([f"{pl}:", f"s_cmp_eq_u32 {sG}, {th[0]}", f"s_cbranch_scc1 {a}", f"s_cmp_eq_u32 {sG}, {th[1]}", f"s_cbranch_scc1 {b}",
                         "s_setprio 0", f"s_branch {pb}", f"{a}:", "s_setprio 2", f"s_mov_b32 {sTH}, {th[1]}", f"s_branch {pb}",
                         f"{b}:", "s_setprio 1", f"s_mov_b32 {sTH}, {th[2]}", f"s_branch {pb}"])
        def vstep(zero):
            def lm(u): return [("m", f"{MF} {r4(LA(qt))}, {r4(ONES)}, {r4(S(2*u,qt))}, {'0' if zero and u == 0 else r4(LA(qt))}") for qt in range(3)]
            assert not (o.deep and o.early)
            late = (o.vdma, vsync(0, "refill")) if o.vdma >= 0 and not (zero and o.deep) else None
            assert o.vdma < 9
            if o.ladd: sp = phase("V", vgroup(zero), vread, kread, ksync("head" if o.kdma >= 0 else "all") if o.early else None, late); B = 24
            else: sp = lm(0) + phase("V", vgroup(zero), vread, kread, ksync("head" if o.kdma >= 0 else "all") if o.early else None, late) + lm(1); B = 27
            if not o.early:
                for x in vsync((20 if o.deep else 16) if zero else 4, "head" if late or (zero and o.deep) else "all"): e(x)
            fl = []
            if o.ladd:
                for qt in range(3): fl.append((0, f"v_mov_b32 v{LA(qt)}, v{LA(qt)+1}" if zero else f"v_add_f32 v{LA(qt)}, v{LA(qt)}, v{LA(qt)+1}"))
            def l1(kt, qt):
                if not o.ladd: return []
                b = S(kt, qt)
                return [f"v_add_f32 v{LA(qt)}, v{LA(qt)}, v{b+i}" for i in range(4)]
            for lst in (exp(2,0), exp(3,0), l1(2,0), exp(2,1), cvt(2,0), exp(3,1), cvt(3,0), l1(2,1), exp(2,2), cvt(2,1), exp(3,2), cvt(3,1), l1(2,2), cvt(2,2), cvt(3,2)):
                for s in lst: fl.append((0, s))
            fl.append((B, "DEADLINE"))
            for qt in range(3):
                for s in l1(3, qt): fl.append((0, s))
            for ks in range(4): fl.append((B + ks, f"v_xor_b32 v{KA[ks]}, {SLOT}, v{KA[ks]}"))
            fl.append((B + 5, f"s_add_u32 {sIT}, {sIT}, 1"))
            fl.append((B + 12, "DEADLINE"))
            weave(sp, fl, o.vbud, LQ(VTAGS if not o.trace else []))
        vstep(True)
        prio_step()

        e(f"L_kfast{sfx}:")
        klate = (o.kdma, ksync("refill")) if o.kdma >= 0 else None
        if not o.early:
            for x in ksync("head" if klate else "all"): e(x)
        fl = []
        for T in range(8): fl.append((3 + T, f"v_xor_b32 v{VA[T]}, {SLOT}, v{VA[T]}"))
        fl.append((36, "DEADLINE"))
        def add(pos, lst):
            for s in lst: fl.append((pos, s))
        def at(kt, qt): return 12 * kt + 9 + qt + 2
        add(at(0,0), exp(0,0)); add(at(0,1), exp(0,1)); add(0, lsum0(0,0)); add(0, cvt(0,0)); add(at(0,2), exp(0,2)); add(0, lsum0(0,1)); add(0, cvt(0,1))
        add(at(1,0), exp(1,0)); add(0, lsum0(0,2)); add(0, cvt(0,2)); add(at(1,1), exp(1,1)); add(0, lsum0(1,0)); add(0, cvt(1,0)); add(at(1,2), exp(1,2)); add(0, lsum0(1,1)); add(0, cvt(1,1))
        OR, MX = TM[0], TM[1]
        P0 = [S(0, qt) + i for qt in range(3) for i in range(4)]
        add(0, [f"v_or3_b32 v{OR}, v{P0[0]}, v{P0[1]}, v{P0[2]}", f"v_or3_b32 v{OR}, v{OR}, v{P0[3]}, v{P0[4]}"])
        add(0, lsum0(1,2)); add(0, cvt(1,2))
        add(0, [f"v_or3_b32 v{OR}, v{OR}, v{P0[5]}, v{P0[6]}", f"v_or3_b32 v{OR}, v{OR}, v{P0[7]}, v{P0[8]}", f"v_or3_b32 v{OR}, v{OR}, v{P0[9]}, v{P0[10]}"])
        add(0, [f"v_or_b32 v{OR}, v{OR}, v{P0[11]}"])
        x2 = [S(2, qt) + i for qt in range(3) for i in range(4)]
        x3 = [S(3, qt) + i for qt in range(3) for i in range(4)]
        add(at(2,0), [f"v_max3_f32 v{MX}, v{x2[0]}, v{x2[1]}, v{x2[2]}"])
        add(0, [f"v_and_b32 v{OR}, {sMASK}, v{OR}"])
        add(at(2,2), [f"v_max3_f32 v{MX}, v{MX}, v{x2[3]}, v{x2[4]}"])
        add(0, [f"v_cmp_ne_u32 {sM}, 0, v{OR}"])
        for k in range(1, 4): add(o.xhold, [f"v_max3_f32 v{MX}, v{MX}, v{x2[3+2*k]}, v{x2[4+2*k]}"])
        xs = [x2[11]] + x3
        for k in range(6): add(99, [f"v_max3_f32 v{MX}, v{MX}, v{xs[2*k]}, v{xs[2*k+1]}"])
        add(99, [f"v_max_f32 v{MX}, v{MX}, v{xs[12]}"])
        weave(phase("K", kgroup_i, kread, vread, vsync(4, "head" if o.vdma >= 0 else "all") if o.early else None, klate), fl, o.kbud, LQ(KTAGS if not o.trace else []))
        e(f"v_cmp_lt_f32 vcc, 1.0, v{MX}")
        e(f"s_or_b64 vcc, vcc, {sM}")
        if not o.nodma: e(f"s_cbranch_vccnz L_redo{sfx}")
        e(f"L_vstep{sfx}:")
        vstep(False)
        prio_step()
        e(f"s_cmp_lt_u32 {sIT}, 8")
        e(f"s_cbranch_scc1 L_kfast{sfx}")
        e("s_waitcnt lgkmcnt(0)")
        e(f"s_branch L_head{sfx}")

        e(f"L_redo{sfx}:")
        e("s_waitcnt lgkmcnt(0)")
        for f in range(NF): emit_reads(kread(f))
        weave(phase("K", kgroup, kread, vread, []), [], 0, LQ(KTAGS))
        rowmax()
        rescale()
        spread()
        half0()
        e(f"s_branch L_vstep{sfx}")
        e(f"L_last{sfx}:")
        e("s_waitcnt vmcnt(0)")
        oproc((" " + o.stpol2.replace("_", " ")) if o.stpol2 not in ("", "none") else "")
        e("s_branch L_fin")
        for blk in tail:
            for s in blk: e(s)
    if o.odd:
        base = dict(early=o.early, kdma=o.kdma, vdma=o.vdma)
        if not o.seq:
            e(f"s_getreg_b32 {sT0}, hwreg(HW_REG_XCC_ID)")
            e(f"s_and_b32 {sT0}, {sT0}, 1")
            e(f"s_cmp_eq_u32 {sT0}, {o.oddpar}")
            e("s_cbranch_scc1 L_init_b")
        emit_body("")
        if o.seq:
            i = L.index("    s_branch L_head"); L[i] = "    s_branch L_head_b"
        pr = o.odd.split(",")
        o.early, o.kdma, o.vdma = pr[0] == "1", int(pr[1]), int(pr[2])
        if len(pr) > 3: o.ladd, o.kbud, o.vbud = pr[3] == "1", int(pr[4]), int(pr[5])
        if len(pr) > 6: o.pth = pr[6].replace("/", ",")
        e("L_init_b:")
        e(f"s_mov_b32 s32, {o.pth.split(',')[0]}")
        emit_body("_b")
    else:
        emit_body("")
    e("L_fin:")
    if o.stamp:
        e("s_waitcnt vmcnt(0)")
        e("s_memrealtime s[52:53]")
        e("s_memtime s[54:55]")
        e("s_getreg_b32 s58, hwreg(HW_REG_XCC_ID)")
        e("s_getreg_b32 s59, hwreg(HW_REG_HW_ID)")
        e("s_waitcnt lgkmcnt(0)")
        e("s_lshl_b32 s60, s2, 2")
        e(f"s_add_u32 s60, s60, {sW}")
        e("s_lshl_b32 s60, s60, 5")
        e("v_mov_b32 v0, s48"); e("v_mov_b32 v1, s50"); e("v_mov_b32 v2, s52"); e("v_mov_b32 v3, s54")
        e("v_mov_b32 v4, s58"); e("v_mov_b32 v5, s59"); e("v_mov_b32 v6, s61"); e("v_mov_b32 v7, s62")
        e("v_mov_b32 v8, s60")
        e("global_store_dwordx4 v8, v[0:3], s[56:57]")
        e("global_store_dwordx4 v8, v[4:7], s[56:57] offset:16")
        if o.trace:
            e("v_mbcnt_lo_u32_b32 v9, -1, 0")
            e("v_mbcnt_hi_u32_b32 v9, -1, v9")
            e("s_lshl_b32 s60, s60, 3")
            e("s_add_u32 s60, s60, 0x200000")
            e("v_lshl_add_u32 v9, v9, 2, s60")
            e(f"global_store_dword v9, v{TM[2]}, s[56:57]")
    e("L_end:")
    e("s_endpgm")
    L.append('.section .rodata,"a"')
    L.append(".p2align 6")
    L.append(f".amdhsa_kernel {o.name}_kernel")
    L.append("  .amdhsa_next_free_vgpr 256")
    L.append(f"  .amdhsa_next_free_sgpr {96 if o.stamp else 48}")
    L.append("  .amdhsa_accum_offset 256")
    L.append("  .amdhsa_group_segment_fixed_size 0")
    L.append("  .amdhsa_kernarg_size 48")
    L.append("  .amdhsa_user_sgpr_count 2")
    L.append("  .amdhsa_user_sgpr_kernarg_segment_ptr 1")
    L.append("  .amdhsa_system_sgpr_workgroup_id_x 1")
    L.append(".end_amdhsa_kernel")
    return "\n".join(L) + "\n"

if __name__ == "__main__":
    o = Opt()
    out = sys.argv[1]
    for a in sys.argv[2:]:
        k, v = a.split("=")
        cur = getattr(o, k)
        setattr(o, k, (v in ("1", "True", "true")) if isinstance(cur, bool) else type(cur)(v))
    txt = gen(o)
    open(out, "w").write(txt)
    b, n = hazard.check(txt)
    print(f"{out}: {n} instrs, {b} hazards")
```

```python
import sys, math, struct
import hazard

def f2u(x):
    return struct.unpack("<I", struct.pack("<f", x))[0]

class Opt:
    ldpol = "nt"
    stpol = "sc1"
    stpol2 = "sc1"
    nh = 2
    nwg = 0
    prio = 1
    stamp = False
    trace = False
    nanfill = False
    wpair = True
    kbud = 8
    vbud = 9
    maxnop = 1
    nf = 4
    vlast = True
    odd = ''
    oddpar = 1
    seq = False
    xmap = 0
    psl = True
    deep = False
    kdma = -1
    vdma = -1
    pth = '4,8,12'
    skip0 = True
    q5 = True
    early = False
    ladd = False
    xhold = 99
    lbud = 16
    nodma = False
    name = "standalone__gqa_softmax__near_ridge"

def cost(s):
    if s.startswith("v_exp") or s.startswith("v_rcp"): return 8
    return 4

def gen(o):
    L = []
    def e(s=""):
        L.append("    " + s if s and not s.endswith(":") else s)
    nwg = o.nwg or 1024 // o.nh
    SLOT = 16384; LDS = 5 * SLOT
    ntl = (" " + o.ldpol.replace("_", " ")) if o.ldpol not in ("", "none") else ""
    nts = (" " + o.stpol.replace("_", " ")) if o.stpol not in ("", "none") else ""
    NF = o.nf
    def O(T, qt): return (T * 3 + qt) * 4
    def LA(qt): return 96 + qt * 4
    def Q(qt, ks): return 108 + (qt * 4 + ks) * 4
    def S(kt, qt): return 156 + (kt * 3 + qt) * 4
    ONES = 204
    def CI(qt): return 208 + qt * 4
    def F(i): return 220 + (i % NF) * 4
    b0 = 220 + NF * 4
    DK, DV = b0, b0 + 1
    KA = [b0 + 2 + i for i in range(4)]
    VA = [b0 + 6 + i for i in range(8)]
    TM = [b0 + 14 + i for i in range(3)]
    assert TM[-1] < 256
    def r4(b): return f"v[{b}:{b+3}]"
    def r2(b): return f"v[{b}:{b+1}]"
    SQ, SK, SV, SO = "s[4:7]", "s[8:11]", "s[12:15]", "s[16:19]"
    sW, sW4K, sK, sV, sIT, sH = "s20", "s21", "s22", "s23", "s24", "s25"
    sKV, sKVN, sQN, sOO, sC, sT0, sT1 = "s26", "s27", "s28", "s29", "s30", "s33", "s34"
    sM = "s[38:39]"; sMASK = "s41"; sSO = "s42"
    OOB = 0x40000000
    NQ, NK = 50331648, 134217728
    MF = "v_mfma_f32_16x16x32_bf16"
    uid = [0]
    def lab(p):
        uid[0] += 1
        return f"L_{p}_{uid[0]}"
    tail = []

    for ln in (
        "softmax(Q K^T / sqrt(128)) V, B=32 H=32 Sq=192 Sk=512 D=128, bf16 in / bf16 out (generated by the author's own script).",
        "kernarg: q, k, v, out, debug, ws (8 bytes each).",
        "512 workgroups x 4 waves, two per CU; each workgroup does two heads, each wave 48 query rows (three 16-row tiles).",
        "S^T = K Q^T and O^T = V^T P^T with v_mfma_f32_16x16x32_bf16, so a lane owns one query column throughout.",
        "LDS (80 KiB): 16 KiB slots K0 K1 V0 V1 filled by LDS-DMA two slots ahead (XOR-swizzled source addresses), one staging slot",
        "for the output; Q of the next head travels through the same slots.",
        "Softmax: log2(e)/sqrt(128) is folded into Q once per head; the first key tile uses the exact row max, later tiles reuse the",
        "running max and a per-tile check falls back to recomputing the tile with the true running max (L_redo) when any score",
        "exceeds it by more than 2^8; row sums come from an extra MFMA against a ones fragment.",
        ): L.append("; " + ln)
    L.append(f"; @launch grid=({nwg},1,1) block=(256,1,1) lds={LDS}")
    L.append('.amdgcn_target "amdgcn-amd-amdhsa--gfx950"')
    L.append(".text")
    L.append(f".globl {o.name}_kernel")
    L.append(".p2align 8")
    L.append(f".type {o.name}_kernel,@function")
    L.append(f"{o.name}_kernel:")
    e(f"s_cmp_ge_u32 s2, {nwg}")
    e("s_cbranch_scc1 L_end")
    if o.stamp:
        e("s_memrealtime s[48:49]")
        e("s_memtime s[50:51]")
        e("s_load_dwordx2 s[56:57], s[0:1], 40")
    e("s_load_dwordx4 s[36:39], s[0:1], 0")
    e("s_load_dwordx4 s[40:43], s[0:1], 16")
    e("v_and_b32 v9, 63, v0")
    e("v_lshrrev_b32 v1, 6, v0")
    e("v_and_b32 v2, 15, v9")
    e(f"v_readfirstlane_b32 {sW}, v1")
    e("v_lshrrev_b32 v3, 4, v9")
    e("v_lshrrev_b32 v4, 2, v2")
    e("v_and_b32 v5, 3, v2")
    e(f"s_lshl_b32 {sW4K}, {sW}, 12")
    e(f"s_lshl_b32 {sT0}, {sW}, 2")
    e("v_lshlrev_b32 v6, 8, v3")
    e(f"v_add_u32 v6, {sW4K}, v6")
    e(f"v_add_u32 v7, {sT0}, v3")
    e("v_xor_b32 v7, v7, v2")
    e(f"v_lshl_add_u32 v{DK}, v7, 4, v6")
    if o.xmap == 1:
        e(f"s_and_b32 {sT0}, s2, 7")
        e(f"s_lshl_b32 {sT0}, {sT0}, 6")
        e(f"s_lshr_b32 {sT1}, s2, 3")
        e(f"s_add_u32 {sT0}, {sT0}, {sT1}")
        e(f"s_lshl_b32 {sT0}, {sT0}, 1")
    else: e(f"s_mul_i32 {sT0}, s2, {o.nh}")
    e(f"s_lshl_b32 {sKVN}, {sT0}, 17")
    e(f"s_mul_i32 {sQN}, {sT0}, 49152")
    e(f"s_mov_b32 m0, {sW4K}")
    e(f"s_add_u32 {sT0}, {sQN}, {SLOT}")
    e(f"s_add_u32 {sT1}, {sQN}, {2*SLOT}")
    e("s_mov_b32 s6, " + str(NQ))
    e("s_mov_b32 s7, 0x20000")
    e("s_waitcnt lgkmcnt(0)")
    e("s_mov_b32 s4, s36")
    e("s_and_b32 s5, s37, 0xffff")
    def dma1(srd, soff, voff, j):
        off = f" offset:{1024*j}" if j else ""
        return f"buffer_load_dwordx4 v{voff}, {srd}, {soff} offen{off}{ntl} lds"
    def dma(srd, soff, voff):
        for j in range(4): e(dma1(srd, soff, voff, j))
    dma(SQ, sQN, DK)
    e(f"s_add_u32 m0, {sW4K}, {2*SLOT}")
    e("s_mov_b32 s8, s38")
    dma(SQ, sT0, DK)
    e(f"s_add_u32 m0, {sW4K}, {4*SLOT}")
    e("s_and_b32 s9, s39, 0xffff")
    dma(SQ, sT1, DK)
    e(f"s_mov_b32 s10, {NK}"); e("s_mov_b32 s11, 0x20000")
    for (b, p, n) in ((12, 40, NK), (16, 42, NQ)):
        e(f"s_mov_b32 s{b}, s{p}")
        e(f"s_and_b32 s{b+1}, s{p+1}, 0xffff")
        e(f"s_mov_b32 s{b+2}, {n}")
        e(f"s_mov_b32 s{b+3}, 0x20000")
    e(f"s_and_b32 {sT0}, {sW}, 1")
    e(f"s_lshl_b32 {sT0}, {sT0}, 2")
    e(f"v_add_u32 v7, {sT0}, v3")
    e("v_lshlrev_b32 v7, 1, v7")
    e("v_xor_b32 v7, v7, v2")
    e(f"v_lshl_add_u32 v{DV}, v7, 4, v6")
    e("v_lshlrev_b32 v6, 12, v4")
    e("v_lshl_add_u32 v6, v5, 8, v6")
    e("v_xor_b32 v7, v3, v2")
    e(f"v_lshl_add_u32 v{KA[0]}, v7, 4, v6")
    for ks in range(1, 4): e(f"v_xor_b32 v{KA[ks]}, {ks<<6}, v{KA[0]}")
    e("v_lshlrev_b32 v6, 12, v3")
    e("v_lshl_add_u32 v6, v4, 8, v6")
    e("v_and_b32 v7, 1, v3")
    e("v_lshl_add_u32 v7, v7, 2, v4")
    e("v_lshlrev_b32 v7, 1, v7")
    e("v_lshrrev_b32 v8, 1, v5")
    e("v_xor_b32 v7, v7, v8")
    e("v_lshl_add_u32 v6, v7, 4, v6")
    e("v_and_b32 v8, 1, v2")
    e("v_lshl_add_u32 v6, v8, 3, v6")
    e(f"v_add_u32 v{VA[0]}, {3*SLOT}, v6")
    for T in range(1, 8): e(f"v_xor_b32 v{VA[T]}, {T<<5}, v{VA[0]}")
    for i in range(4): e(f"v_mov_b32 v{ONES+i}, 0x3f803f80")
    e(f"s_add_u32 {sK}, {sW4K}, {SLOT}")
    e(f"s_add_u32 {sV}, {sW4K}, {3*SLOT}")
    e(f"s_mov_b32 {sC}, {hex(f2u(math.log2(math.e) / math.sqrt(128.0)))}")
    e(f"s_mov_b32 {sMASK}, 0x40004000")
    e(f"s_mov_b32 {sH}, 0")
    e(f"s_mov_b32 {sOO}, {OOB}")
    if o.stamp:
        e("s_mov_b32 s61, 0"); e("s_mov_b32 s62, 0")
    if o.prio == 1:
        e("s_setprio 3"); e("s_mov_b32 s31, 0"); e(f"s_mov_b32 s32, {o.pth.split(',')[0]}")
    if o.nanfill:
        for i in range(108): e(f"v_mov_b32 v{i}, 0x7fc00000")
    def tr():
        if not o.trace: return []
        return ["s_memrealtime s[66:67]", "s_memtime s[68:69]", "s_waitcnt lgkmcnt(0)", "s_mov_b32 s71, m0", "s_mov_b32 m0, s70", "s_nop 0",
                f"v_writelane_b32 v{TM[2]}, s66, m0", "s_add_u32 m0, s70, 32", "s_nop 0", f"v_writelane_b32 v{TM[2]}, s68, m0", "s_mov_b32 m0, s71", "s_add_u32 s70, s70, 1"]
    if o.trace:
        e("s_mov_b32 s70, 0")
        e(f"v_mov_b32 v{TM[2]}, 0")

    def allreduce(op, x, t):
        for a, b in zip(x, t): e(f"v_mov_b32 v{b}, v{a}")
        e("s_nop 1")
        for a, b in zip(x, t): e(f"v_permlane16_swap_b32 v{a}, v{b}")
        for a, b in zip(x, t): e(f"{op} v{a}, v{a}, v{b}")
        for a, b in zip(x, t): e(f"v_mov_b32 v{b}, v{a}")
        e("s_nop 1")
        for a, b in zip(x, t): e(f"v_permlane32_swap_b32 v{a}, v{b}")
        for a, b in zip(x, t): e(f"{op} v{a}, v{a}, v{b}")

    class LQ:
        def __init__(s, pre=()): s.q = list(pre)
        def read(s, tag): s.q.append(tag); assert len(s.q) <= 15, s.q
        def wait(s, tag):
            if tag not in s.q: return None
            i = len(s.q) - 1 - s.q[::-1].index(tag)
            n = len(s.q) - 1 - i
            s.q = s.q[i + 1:]
            return f"s_waitcnt lgkmcnt({n})"
    def short(text):
        c = hazard.I(text, 0); d = 0; miss = 0
        for ln in reversed(L):
            t = ln.strip()
            if t.endswith(":"): continue
            if t.startswith("s_branch") or t.startswith("s_endpgm") or d >= 13: break
            p = hazard.I(t, 0)
            miss = max(miss, hazard.need(p, c) - d)
            d += p.states
        return miss
    def safe_e(x):
        m = short(x)
        if m > 0: e(f"s_nop {m-1}")
        e(x)
    def weave(spine, fillers, bud, lq, bud2=None):
        q = list(fillers); j = -1; credit = 0
        for s in spine:
            if s[0] == "r": lq.read(s[1]); e(s[2]); continue
            if s[0] == "x":
                for x in s[1]: e(x)
                if o.trace and any("lgkmcnt(0)" in x for x in s[1]): lq.q = []
                continue
            if s[0] == "w":
                w = lq.wait(s[1])
                if w: e(w)
                continue
            dl = [i for i, x in enumerate(q) if x[1] == "DEADLINE" and x[0] <= j + 1]
            if dl:
                for _, ins in q[:dl[-1] + 1]:
                    if ins == "DEADLINE": continue
                    for x in (ins if isinstance(ins, list) else [ins]): safe_e(x)
                q = q[dl[-1] + 1:]
            safe_e(s[1])
            j += 1
            if bud2 and j >= bud2[0]: bud = bud2[1]
            credit += bud
            while q and (q[0][0] <= j or q[0][1] == "DEADLINE") and credit > 0:
                if q[0][1] == "DEADLINE": q.pop(0); continue
                ins = q[0][1] if isinstance(q[0][1], list) else [q[0][1]]
                if short(ins[0]) > o.maxnop: break
                q.pop(0)
                for x in ins:
                    safe_e(x); credit -= cost(x)
            credit = min(credit, bud)
        for _, ins in q:
            if ins == "DEADLINE": continue
            for x in (ins if isinstance(ins, list) else [ins]): safe_e(x)

    def kread(f):
        kt, ks = f >> 2, f & 3
        off = f" offset:{kt*1024}" if kt else ""
        return [("r", f"K{f}", f"ds_read_b128 {r4(F(f))}, v{KA[ks]}{off}")]
    def vread(f):
        u, T = f >> 3, f & 7
        r = []
        for ee in range(2):
            off = 2048 * u + 1024 * ee
            offs = f" offset:{off}" if off else ""
            r.append(("r", f"V{f}", f"ds_read_b64_tr_b16 {r2(F(f)+2*ee)}, v{VA[T]}{offs}"))
        return r
    KTAGS = [f"K{f}" for f in range(NF)]
    VTAGS = [f"V{f}" for f in range(NF) for _ in range(2)]
    def emit_reads(lst):
        for x in lst: e(x[2])
    def phase(n, group, own, nxt, sync, late=None):
        sp = []
        for f in range(16):
            if not o.wpair: sp.append(("w", f"{n}{f}"))
            elif f % 2 == 0: sp.append(("w", f"{n}{f+1}"))
            sp += group(f)
            if f + NF < 16: sp += own(f + NF)
            if late and f == late[0]: sp.append(("x", late[1]))
            if nxt and o.early:
                if f == 12: sp.append(("x", sync))
                if f >= 12: sp += nxt(f - 12)
                if f == 15:
                    for j in range(4, NF): sp += nxt(j)
        return sp
    def kgroup_(init):
        def g(f):
            kt, ks = f >> 2, f & 3
            return [("m", f"{MF} {r4(S(kt,qt))}, {r4(F(f))}, {r4(Q(qt,ks))}, {(r4(CI(qt)) if init else '0') if ks == 0 else r4(S(kt, qt))}") for qt in range(3)]
        return g
    kgroup = kgroup_(False); kgroup_i = kgroup_(True)
    def vgroup(zero):
        def g(f):
            u, T = f >> 3, f & 7
            return [("m", f"{MF} {r4(O(T,qt))}, {r4(F(f))}, {r4(S(2*u,qt))}, {'0' if zero and u == 0 else r4(O(T,qt))}") for qt in range(3)]
        return g
    def fma(kt, qt): return [f"v_add_f32 v{S(kt,qt)+i}, v{S(kt,qt)+i}, v{CI(qt)}" for i in range(4)]
    def exp(kt, qt): return [f"v_exp_f32 v{S(kt,qt)+i}, v{S(kt,qt)+i}" for i in range(4)]
    def cvt(kt, qt):
        b = S(kt & ~1, qt) + 2 * (kt & 1); s = S(kt, qt)
        return [f"v_cvt_pk_bf16_f32 v{b}, v{s}, v{s+1}", f"v_cvt_pk_bf16_f32 v{b+1}, v{s+2}, v{s+3}"]
    def lsum0(kt, qt):
        b = S(kt, qt); t = LA(qt) + 1
        if not o.ladd: return []
        if kt == 0: return [f"v_add_f32 v{t}, v{b}, v{b+1}", f"v_add_f32 v{t}, v{t}, v{b+2}", f"v_add_f32 v{t}, v{t}, v{b+3}"]
        return [f"v_add_f32 v{t}, v{t}, v{b+i}" for i in range(4)]
    def lsum1(kt, qt):
        b = S(kt, qt); t = LA(qt) + (kt & 1)
        return [f"v_add_f32 v{t}, v{t}, v{b+i}" for i in range(4)] if o.ladd else []
    def vsync(vm, part="all"):
        sp_l = lab("vr"); back = lab("vb")
        h = [f"s_mov_b32 m0, {sV}", f"s_xor_b32 {sV}, {sV}, {SLOT}", f"s_lshl_b32 {sSO}, {sIT}, 14", f"s_add_u32 {sSO}, {sSO}, {sKV}"]
        h += [f"s_cmp_eq_u32 {sIT}, 7"] if part == "all" else []
        if o.deep and vm == 4:
            w1, wb = lab("vw"), lab("vwb")
            h = h[:4] + [f"s_cmp_eq_u32 {sIT}, 1", f"s_cbranch_scc1 {w1}", "s_waitcnt vmcnt(4)", f"{wb}:"] + h[4:]
            tail.append([f"{w1}:", "s_waitcnt vmcnt(16)", f"s_branch {wb}"])
        else: h += [f"s_waitcnt vmcnt({vm})"]
        h += ["s_barrier"] + ([] if o.early else [x[2] for f in range(NF) for x in vread(f)]) + tr()
        if part == "head": return h
        r = ([f"s_cmp_eq_u32 {sIT}, 7"] if o.trace or part == "refill" else []) + [f"s_cbranch_scc1 {sp_l}"]
        if not o.nodma: r += [dma1(SV, sSO, DV, j) for j in range(4)]
        r += [f"{back}:"]
        tail.append([f"{sp_l}:", f"s_add_u32 {sT0}, {sQN}, {SLOT}"] + [dma1(SQ, sT0, DK, j) for j in range(4)]
                    + [f"s_add_u32 m0, {sW4K}, {4*SLOT}", f"s_add_u32 {sT0}, {sQN}, {2*SLOT}"] + [dma1(SQ, sT0, DK, j) for j in range(4)] + [f"s_branch {back}"])
        return r if part == "refill" else h + r
    def ksync(part="all"):
        sp_l = lab("kr"); back = lab("kb")
        h = [f"s_cmp_eq_u32 {sIT}, 8", f"s_cbranch_scc1 {back}"] if o.early else []
        h += [f"s_mov_b32 m0, {sK}", f"s_xor_b32 {sK}, {sK}, {SLOT}", f"s_lshl_b32 {sSO}, {sIT}, 14", f"s_add_u32 {sSO}, {sSO}, {sKV}"]
        h += [f"s_cmp_eq_u32 {sIT}, 7"] if part == "all" else []
        if part == "refill": pass
        elif o.deep:
            w1, wb = lab("kw"), lab("kwb")
            h = h[:-1 if part == "all" else None] + [f"s_cmp_eq_u32 {sIT}, 1", f"s_cbranch_scc1 {w1}", "s_waitcnt vmcnt(4)", f"{wb}:"] + (h[-1:] if part == "all" else [])
            tail.append([f"{w1}:", "s_waitcnt vmcnt(16)", f"s_branch {wb}"])
        else: h += ["s_waitcnt vmcnt(4)"]
        h += ["s_barrier"] + ([] if o.early else [x[2] for f in range(NF) for x in kread(f)]) + tr()
        if part == "head": return h + ([f"{back}:"] + (["s_waitcnt lgkmcnt(0)"] if o.trace else []) if o.early else [])
        r = ([f"s_cmp_eq_u32 {sIT}, 7"] if o.trace or part == "refill" else []) + [f"s_cbranch_scc1 {sp_l}"]
        if not o.nodma: r += [dma1(SK, sSO, DK, j) for j in range(4)]
        r += [f"{back}:"]
        if o.trace and o.early and part == "all": r += ["s_waitcnt lgkmcnt(0)"]
        tail.append([f"{sp_l}:"] + [dma1(SQ, sQN, DK, j) for j in range(4)] + [f"s_branch {back}"])
        return r if part == "refill" else h + r

    def emit_body(sfx):
        del tail[:]
        e(f"L_head{sfx}:")
        X = [S(0, 0) + i for i in range(16)]
        AX = [S(2, 0) + i for i in range(12)]
        e(f"v_mbcnt_lo_u32_b32 v{X[8]}, -1, 0")
        e(f"v_mbcnt_hi_u32_b32 v{X[8]}, -1, v{X[8]}")
        e(f"v_and_b32 v{X[0]}, 15, v{X[8]}")
        e(f"v_lshrrev_b32 v{X[1]}, 4, v{X[8]}")
        e(f"v_lshlrev_b32 v{X[3]}, 8, v{X[0]}")
        e(f"s_lshl_b32 {sT0}, {sW}, 2")
        e(f"v_and_b32 v{X[2]}, 3, v{X[0]}")
        e(f"v_add_u32 v{X[2]}, {sT0}, v{X[2]}")
        e(f"v_xor_b32 v{X[2]}, v{X[2]}, v{X[1]}")
        e(f"v_lshl_add_u32 v{X[9]}, v{X[2]}, 4, v{X[3]}")
        e(f"v_add_u32 v{X[9]}, {sW4K}, v{X[9]}")
        for ks in range(1, 4): e(f"v_xor_b32 v{AX[ks]}, {ks<<6}, v{X[9]}")
        e(f"s_cmp_eq_u32 {sH}, {o.nh}")
        e(f"s_cbranch_scc1 L_last{sfx}")
        if o.deep: e("s_barrier")
        for j in range(3):
            qpos = [0, 2, 4][j]
            if j == 2:
                for a in [X[9]] + AX[1:4]: e(f"v_add_u32 v{a}, {4*SLOT}, v{a}")
            e("s_waitcnt vmcnt(8)")
            for ks in range(4): e(f"ds_read_b128 {r4(Q(j,ks))}, v{X[9] if ks == 0 else AX[ks]} offset:{(qpos & 3)*SLOT}")
            if j < 2:
                e(f"s_add_u32 m0, {sW4K}, {qpos*SLOT}")
                e("s_waitcnt lgkmcnt(0)")
                dma(SK if j == 0 else SV, sKVN, DK if j == 0 else DV)
            else:
                if o.deep:
                    e(f"s_add_u32 m0, {sW4K}, {SLOT}")
                    e(f"s_add_u32 {sT0}, {sKVN}, {SLOT}")
                    dma(SK, sT0, DK)
                    e(f"s_add_u32 m0, {sW4K}, {3*SLOT}")
                    e("s_nop 0")
                    dma(SV, sT0, DV)
                e("s_waitcnt lgkmcnt(0)")
            for r in (range(48) if j == 2 else []) if o.psl else range(16 * j, 16 * j + 16):
                q = Q(0, 0) + r; t0 = CI(0) + 2 * (r % 3); t1 = t0 + 1
                e(f"v_lshlrev_b32 v{t0}, 16, v{q}")
                e(f"v_and_b32 v{t1}, 0xffff0000, v{q}")
                e(f"v_mul_f32 v{t0}, {sC}, v{t0}")
                e(f"v_mul_f32 v{t1}, {sC}, v{t1}")
                e(f"v_cvt_pk_bf16_f32 v{q}, v{t0}, v{t1}")
        if o.skip0:
            e(f"s_cmp_eq_u32 {sH}, 0")
            e(f"s_cbranch_scc1 L_first{sfx}")
            tail.append([f"L_first{sfx}:"] + [f"buffer_store_dwordx4 {r4(F(0))}, v{X[9]}, {SO}, {sOO} offen{nts}"] * 12 + [f"s_branch L_ohead{sfx}"])
        def oproc(pol):
            if o.ladd: allreduce("v_add_f32", [LA(j) for j in range(3)], [LA(j) + 1 for j in range(3)])
            for j in range(0 if o.vlast else 3): e(f"v_rcp_f32 v{X[13+j]}, v{LA(j)}")
            e(f"s_add_u32 {sT1}, {sW4K}, {4*SLOT}")
            e(f"v_lshrrev_b32 v{X[2]}, 1, v{X[1]}")
            e(f"v_xor_b32 v{X[2]}, v{X[2]}, v{X[0]}")
            e(f"v_lshl_add_u32 v{X[2]}, v{X[2]}, 4, v{X[3]}")
            e(f"v_and_b32 v{X[5]}, 1, v{X[1]}")
            e(f"v_lshl_add_u32 v{X[6]}, v{X[5]}, 3, v{X[2]}")
            e(f"v_add_u32 v{AX[4]}, {sT1}, v{X[6]}")
            for T in range(1, 8): e(f"v_xor_b32 v{AX[4+T]}, {T<<5}, v{AX[4]}")
            e(f"v_xor_b32 v{X[2]}, v{X[0]}, v{X[1]}")
            e(f"v_lshlrev_b32 v{X[2]}, 4, v{X[2]}")
            e(f"v_lshl_add_u32 v{X[7]}, v{X[1]}, 8, v{X[2]}")
            e(f"v_add_u32 v{AX[0]}, {sT1}, v{X[7]}")
            for jj in range(1, 4): e(f"v_xor_b32 v{AX[jj]}, {jj<<6}, v{AX[0]}")
            e(f"v_lshlrev_b32 v{X[12]}, 4, v{X[8]}")
            e(f"v_add_u32 v{X[12]}, {sW4K}, v{X[12]}")
            RB = [[F(jj) for jj in range(4)], [S(1,1), S(1,2), S(3,0), S(3,1)], [F(jj) for jj in range(4)]]
            def norm(j):
                if o.vlast: return
                for T in range(8):
                    b = O(T, j)
                    for i in range(4): e(f"v_mul_f32 v{b+i}, v{b+i}, v{X[13+j]}")
                for T in range(8):
                    b = O(T, j)
                    e(f"v_cvt_pk_bf16_f32 v{b}, v{b}, v{b+1}")
                    e(f"v_cvt_pk_bf16_f32 v{b+1}, v{b+2}, v{b+3}")
            def stage(j):
                for T in range(8): e(f"ds_write_b64 v{AX[4+T]}, {r2(O(T, j))}")
                for jj in range(4): e(f"ds_read_b128 {r4(RB[j][jj])}, v{AX[jj]} offset:{jj*1024}")
            def store(j):
                e(f"s_add_u32 {sT0}, {sOO}, {j*SLOT}")
                for jj in range(4):
                    e(f"s_waitcnt lgkmcnt({3-jj})")
                    e(f"buffer_store_dwordx4 {r4(RB[j][jj])}, v{X[12]}, {SO}, {sT0} offen offset:{jj*1024}{pol}")
            norm(0); e("s_waitcnt lgkmcnt(0)"); stage(0); norm(1); store(0); stage(1); norm(2); store(1); stage(2); store(2)
        oproc(nts)
        e(f"L_ohead{sfx}:")
        e(f"s_mov_b32 {sOO}, {sQN}")
        e(f"s_add_u32 {sKV}, {sKVN}, {SLOT}")
        e(f"s_add_u32 {sH}, {sH}, 1")
        e(f"s_add_u32 {sKVN}, {sKVN}, 131072")
        e(f"s_add_u32 {sQN}, {sQN}, 49152")
        e(f"s_cmp_eq_u32 {sH}, {o.nh}")
        e(f"s_cselect_b32 {sKVN}, {OOB}, {sKVN}")
        e(f"s_cselect_b32 {sQN}, {OOB}, {sQN}")
        e(f"s_mov_b32 {sIT}, 0")
        if o.stamp:
            e("s_mov_b32 s61, s62")
            e("s_memrealtime s[62:63]")
            e("s_waitcnt lgkmcnt(0)")

        e(f"s_mov_b32 m0, {sK}")
        e(f"s_xor_b32 {sK}, {sK}, {SLOT}")
        for T in range(8): e(f"v_xor_b32 v{VA[T]}, {SLOT}, v{VA[T]}")
        e(f"s_waitcnt vmcnt({24 if o.deep else 16})")
        e("s_barrier")
        for x in tr(): e(x)
        for f in range(NF): emit_reads(kread(f))
        if not o.deep: dma(SK, sKV, DK)
        LM = [CI(qt) + 1 for qt in range(3)]; T1 = [CI(qt) + 2 for qt in range(3)]
        vals = [[S(kt, qt) + i for kt in range(4) for i in range(4)] for qt in range(3)]
        def rowmax():
            for qt in range(3):
                v = vals[qt]; safe_e(f"v_max3_f32 v{LM[qt]}, v{v[0]}, v{v[1]}, v{v[2]}")
            for k in range(6):
                for qt in range(3):
                    v = vals[qt]; safe_e(f"v_max3_f32 v{LM[qt]}, v{LM[qt]}, v{v[3+2*k]}, v{v[4+2*k]}")
            for qt in range(3): safe_e(f"v_max_f32 v{LM[qt]}, v{LM[qt]}, v{vals[qt][15]}")
            allreduce("v_max_f32", LM, T1)
            for qt in range(3): e(f"v_sub_f32 v{LM[qt]}, 0xc0e00000, v{LM[qt]}")
        def spread():
            for qt in range(3):
                for i in (0, 2, 3): e(f"v_mov_b32 v{CI(qt)+i}, v{LM[qt]}")
        def half0():
            for qt in range(3):
                for kt in range(4):
                    for s in fma(kt, qt): e(s)
            for qt in range(3):
                for kt in range(2):
                    for s in exp(kt, qt): e(s)
            for qt in range(3):
                for kt in range(2):
                    for s in lsum0(kt, qt): e(s)
            for qt in range(3):
                for kt in range(2):
                    for s in cvt(kt, qt): e(s)
        def rescale():
            for qt in range(3): e(f"v_min_f32 v{LM[qt]}, v{LM[qt]}, v{CI(qt)}")
            for qt in range(3): e(f"v_sub_f32 v{T1[qt]}, v{LM[qt]}, v{CI(qt)}")
            for qt in range(3): e(f"v_exp_f32 v{T1[qt]}, v{T1[qt]}")
            e("s_nop 0")
            for qt in range(3):
                for i in range(1 if o.ladd else 4): e(f"v_mul_f32 v{LA(qt)+i}, v{LA(qt)+i}, v{T1[qt]}")
            for T in range(8):
                for qt in range(3):
                    for i in range(4): e(f"v_mul_f32 v{O(T,qt)+i}, v{O(T,qt)+i}, v{T1[qt]}")
        weave(phase("K", kgroup, kread, vread, vsync(16, "head" if o.vdma >= 0 else "all") if o.early else None), [], 0, LQ(KTAGS))
        rowmax()
        spread()
        half0()

        sG, sTH = "s31", "s32"
        def prio_step():
            if o.prio != 1: return
            th = [int(x) for x in o.pth.split(",")]
            pl = lab("pp"); pb = lab("pb")
            e(f"s_add_u32 {sG}, {sG}, 1")
            e(f"s_cmp_eq_u32 {sG}, {sTH}")
            e(f"s_cbranch_scc1 {pl}")
            e(f"{pb}:")
            a, b = lab("pa"), lab("pa")
            tail.append([f"{pl}:", f"s_cmp_eq_u32 {sG}, {th[0]}", f"s_cbranch_scc1 {a}", f"s_cmp_eq_u32 {sG}, {th[1]}", f"s_cbranch_scc1 {b}",
                         "s_setprio 0", f"s_branch {pb}", f"{a}:", "s_setprio 2", f"s_mov_b32 {sTH}, {th[1]}", f"s_branch {pb}",
                         f"{b}:", "s_setprio 1", f"s_mov_b32 {sTH}, {th[2]}", f"s_branch {pb}"])
        def vstep(zero, last=False):
            def lm(u): return [("m", f"{MF} {r4(LA(qt))}, {r4(ONES)}, {r4(S(2*u,qt))}, {'0' if zero and u == 0 else r4(LA(qt))}") for qt in range(3)]
            assert not (o.deep and o.early)
            late = (o.vdma, vsync(0, "refill")) if o.vdma >= 0 and not (zero and o.deep) else None
            assert o.vdma < 9
            if o.ladd: sp = phase("V", vgroup(zero), vread, kread, ksync("head" if o.kdma >= 0 else "all") if o.early else None, late); B = 24
            else: sp = lm(0) + phase("V", vgroup(zero), vread, kread, ksync("head" if o.kdma >= 0 else "all") if o.early else None, late) + lm(1); B = 27
            if last:
                assert not o.ladd and not o.early
                ph_ = phase("V", vgroup(False), vread, None, None, late)
                mi = [i for i, x in enumerate(ph_) if x[0] == "m"]
                sp = lm(0) + ph_[:mi[24]] + lm(1) + ph_[mi[24]:]
            if not o.early:
                for x in vsync((20 if o.deep else 16) if zero else 4, "head" if late or (zero and o.deep) else "all"): e(x)
            fl = []
            if o.ladd:
                for qt in range(3): fl.append((0, f"v_mov_b32 v{LA(qt)}, v{LA(qt)+1}" if zero else f"v_add_f32 v{LA(qt)}, v{LA(qt)}, v{LA(qt)+1}"))
            def l1(kt, qt):
                if not o.ladd: return []
                b = S(kt, qt)
                return [f"v_add_f32 v{LA(qt)}, v{LA(qt)}, v{b+i}" for i in range(4)]
            for lst in (exp(2,0), exp(3,0), l1(2,0), exp(2,1), cvt(2,0), exp(3,1), cvt(3,0), l1(2,1), exp(2,2), cvt(2,1), exp(3,2), cvt(3,1), l1(2,2), cvt(2,2), cvt(3,2)):
                for s in lst: fl.append((0, s))
            fl.append((B, "DEADLINE"))
            for qt in range(3):
                for s in l1(3, qt): fl.append((0, s))
            if last:
                for ks in range(4): fl.append((B + ks, f"v_xor_b32 v{KA[ks]}, {SLOT}, v{KA[ks]}"))
                for qt in range(3): fl.append((B + 3 + qt, f"v_rcp_f32 v{CI(qt)}, v{LA(qt)}"))
                for T in range(8):
                    for qt in range(3):
                        b = O(T, qt)
                        for i in range(4): fl.append((B + 3 + 3*T + qt + 1, f"v_mul_f32 v{b+i}, v{b+i}, v{CI(qt)}"))
                        fl.append((0, f"v_cvt_pk_bf16_f32 v{b}, v{b}, v{b+1}"))
                        fl.append((0, f"v_cvt_pk_bf16_f32 v{b+1}, v{b+2}, v{b+3}"))
                weave(sp, fl, o.vbud, LQ(VTAGS if not o.trace else []), (B + 3, o.lbud))
                return
            for ks in range(4): fl.append((B + ks, f"v_xor_b32 v{KA[ks]}, {SLOT}, v{KA[ks]}"))
            fl.append((B + 5, f"s_add_u32 {sIT}, {sIT}, 1"))
            fl.append((B + 12, "DEADLINE"))
            weave(sp, fl, o.vbud, LQ(VTAGS if not o.trace else []))
        vstep(True)
        prio_step()

        e(f"L_kfast{sfx}:")
        klate = (o.kdma, ksync("refill")) if o.kdma >= 0 else None
        if not o.early:
            for x in ksync("head" if klate else "all"): e(x)
        fl = []
        for T in range(8): fl.append((3 + T, f"v_xor_b32 v{VA[T]}, {SLOT}, v{VA[T]}"))
        fl.append((36, "DEADLINE"))
        def add(pos, lst):
            for s in lst: fl.append((pos, s))
        def at(kt, qt): return 12 * kt + 9 + qt + 2
        add(at(0,0), exp(0,0)); add(at(0,1), exp(0,1)); add(0, lsum0(0,0)); add(0, cvt(0,0)); add(at(0,2), exp(0,2)); add(0, lsum0(0,1)); add(0, cvt(0,1))
        add(at(1,0), exp(1,0)); add(0, lsum0(0,2)); add(0, cvt(0,2)); add(at(1,1), exp(1,1)); add(0, lsum0(1,0)); add(0, cvt(1,0)); add(at(1,2), exp(1,2)); add(0, lsum0(1,1)); add(0, cvt(1,1))
        OR, MX = TM[0], TM[1]
        P0 = [S(0, qt) + i for qt in range(3) for i in range(4)]
        add(0, [f"v_or3_b32 v{OR}, v{P0[0]}, v{P0[1]}, v{P0[2]}", f"v_or3_b32 v{OR}, v{OR}, v{P0[3]}, v{P0[4]}"])
        add(0, lsum0(1,2)); add(0, cvt(1,2))
        add(0, [f"v_or3_b32 v{OR}, v{OR}, v{P0[5]}, v{P0[6]}", f"v_or3_b32 v{OR}, v{OR}, v{P0[7]}, v{P0[8]}", f"v_or3_b32 v{OR}, v{OR}, v{P0[9]}, v{P0[10]}"])
        add(0, [f"v_or_b32 v{OR}, v{OR}, v{P0[11]}"])
        x2 = [S(2, qt) + i for qt in range(3) for i in range(4)]
        x3 = [S(3, qt) + i for qt in range(3) for i in range(4)]
        add(at(2,0), [f"v_max3_f32 v{MX}, v{x2[0]}, v{x2[1]}, v{x2[2]}"])
        add(0, [f"v_and_b32 v{OR}, {sMASK}, v{OR}"])
        add(at(2,2), [f"v_max3_f32 v{MX}, v{MX}, v{x2[3]}, v{x2[4]}"])
        add(0, [f"v_cmp_ne_u32 {sM}, 0, v{OR}"])
        for k in range(1, 4): add(o.xhold, [f"v_max3_f32 v{MX}, v{MX}, v{x2[3+2*k]}, v{x2[4+2*k]}"])
        xs = [x2[11]] + x3
        for k in range(6): add(99, [f"v_max3_f32 v{MX}, v{MX}, v{xs[2*k]}, v{xs[2*k+1]}"])
        add(99, [f"v_max_f32 v{MX}, v{MX}, v{xs[12]}"])
        weave(phase("K", kgroup_i, kread, vread, vsync(4, "head" if o.vdma >= 0 else "all") if o.early else None, klate), fl, o.kbud, LQ(KTAGS if not o.trace else []))
        e(f"v_cmp_lt_f32 vcc, 1.0, v{MX}")
        e(f"s_or_b64 vcc, vcc, {sM}")
        if not o.nodma: e(f"s_cbranch_vccnz L_redo{sfx}")
        e(f"L_vstep{sfx}:")
        if o.vlast:
            e(f"s_cmp_eq_u32 {sIT}, 7")
            e(f"s_cbranch_scc1 L_vlast{sfx}")
        vstep(False)
        prio_step()
        if o.vlast:
            e(f"s_branch L_kfast{sfx}")
            e(f"L_vlast{sfx}:")
            vstep(False, True)
            prio_step()
        else:
            e(f"s_cmp_lt_u32 {sIT}, 8")
            e(f"s_cbranch_scc1 L_kfast{sfx}")
        e("s_waitcnt lgkmcnt(0)")
        e(f"s_branch L_head{sfx}")

        e(f"L_redo{sfx}:")
        e("s_waitcnt lgkmcnt(0)")
        for f in range(NF): emit_reads(kread(f))
        weave(phase("K", kgroup, kread, vread, []), [], 0, LQ(KTAGS))
        rowmax()
        rescale()
        spread()
        half0()
        e(f"s_branch L_vstep{sfx}")
        e(f"L_last{sfx}:")
        e("s_waitcnt vmcnt(0)")
        oproc((" " + o.stpol2.replace("_", " ")) if o.stpol2 not in ("", "none") else "")
        e("s_branch L_fin")
        for blk in tail:
            for s in blk: e(s)
    if o.odd:
        base = dict(early=o.early, kdma=o.kdma, vdma=o.vdma)
        if not o.seq:
            e(f"s_getreg_b32 {sT0}, hwreg(HW_REG_XCC_ID)")
            e(f"s_and_b32 {sT0}, {sT0}, 1")
            e(f"s_cmp_eq_u32 {sT0}, {o.oddpar}")
            e("s_cbranch_scc1 L_init_b")
        emit_body("")
        if o.seq:
            i = L.index("    s_branch L_head"); L[i] = "    s_branch L_head_b"
        pr = o.odd.split(",")
        o.early, o.kdma, o.vdma = pr[0] == "1", int(pr[1]), int(pr[2])
        if len(pr) > 3: o.ladd, o.kbud, o.vbud = pr[3] == "1", int(pr[4]), int(pr[5])
        if len(pr) > 6: o.pth = pr[6].replace("/", ",")
        e("L_init_b:")
        e(f"s_mov_b32 s32, {o.pth.split(',')[0]}")
        emit_body("_b")
    else:
        emit_body("")
    e("L_fin:")
    if o.stamp:
        e("s_waitcnt vmcnt(0)")
        e("s_memrealtime s[52:53]")
        e("s_memtime s[54:55]")
        e("s_getreg_b32 s58, hwreg(HW_REG_XCC_ID)")
        e("s_getreg_b32 s59, hwreg(HW_REG_HW_ID)")
        e("s_waitcnt lgkmcnt(0)")
        e("s_lshl_b32 s60, s2, 2")
        e(f"s_add_u32 s60, s60, {sW}")
        e("s_lshl_b32 s60, s60, 5")
        e("v_mov_b32 v0, s48"); e("v_mov_b32 v1, s50"); e("v_mov_b32 v2, s52"); e("v_mov_b32 v3, s54")
        e("v_mov_b32 v4, s58"); e("v_mov_b32 v5, s59"); e("v_mov_b32 v6, s61"); e("v_mov_b32 v7, s62")
        e("v_mov_b32 v8, s60")
        e("global_store_dwordx4 v8, v[0:3], s[56:57]")
        e("global_store_dwordx4 v8, v[4:7], s[56:57] offset:16")
        if o.trace:
            e("v_mbcnt_lo_u32_b32 v9, -1, 0")
            e("v_mbcnt_hi_u32_b32 v9, -1, v9")
            e("s_lshl_b32 s60, s60, 3")
            e("s_add_u32 s60, s60, 0x200000")
            e("v_lshl_add_u32 v9, v9, 2, s60")
            e(f"global_store_dword v9, v{TM[2]}, s[56:57]")
    e("L_end:")
    e("s_endpgm")
    L.append('.section .rodata,"a"')
    L.append(".p2align 6")
    L.append(f".amdhsa_kernel {o.name}_kernel")
    L.append("  .amdhsa_next_free_vgpr 256")
    L.append(f"  .amdhsa_next_free_sgpr {96 if o.stamp else 48}")
    L.append("  .amdhsa_accum_offset 256")
    L.append("  .amdhsa_group_segment_fixed_size 0")
    L.append("  .amdhsa_kernarg_size 48")
    L.append("  .amdhsa_user_sgpr_count 2")
    L.append("  .amdhsa_user_sgpr_kernarg_segment_ptr 1")
    L.append("  .amdhsa_system_sgpr_workgroup_id_x 1")
    L.append(".end_amdhsa_kernel")
    return "\n".join(L) + "\n"

if __name__ == "__main__":
    o = Opt()
    out = sys.argv[1]
    for a in sys.argv[2:]:
        k, v = a.split("=")
        cur = getattr(o, k)
        setattr(o, k, (v in ("1", "True", "true")) if isinstance(cur, bool) else type(cur)(v))
    txt = gen(o)
    open(out, "w").write(txt)
    b, n = hazard.check(txt)
    print(f"{out}: {n} instrs, {b} hazards")
```

```python
import sys, math, struct
import hazard

def f2u(x):
    return struct.unpack("<I", struct.pack("<f", x))[0]

class Opt:
    ldpol = "nt"
    stpol = "sc1"
    stpol2 = "sc1"
    nh = 2
    nwg = 0
    prio = 1
    stamp = False
    trace = False
    nanfill = False
    wpair = False
    kbud = 0
    vbud = 0
    maxnop = 1
    nf = 4
    xfirst = True
    allk = False
    vlast = True
    odd = ''
    oddpar = 1
    seq = False
    xmap = 0
    psl = True
    deep = False
    kdma = -1
    vdma = -1
    pth = '4,8,12'
    skip0 = True
    q5 = True
    early = False
    ladd = False
    xhold = 99
    lbud = 16
    nodma = False
    name = "standalone__gqa_softmax__near_ridge"

def cost(s):
    if s.startswith("v_exp") or s.startswith("v_rcp"): return 8
    return 4

def gen(o):
    L = []
    def e(s=""):
        L.append("    " + s if s and not s.endswith(":") else s)
    nwg = o.nwg or 1024 // o.nh
    SLOT = 16384; LDS = 5 * SLOT
    ntl = (" " + o.ldpol.replace("_", " ")) if o.ldpol not in ("", "none") else ""
    nts = (" " + o.stpol.replace("_", " ")) if o.stpol not in ("", "none") else ""
    NF = o.nf
    def O(T, qt): return (T * 3 + qt) * 4
    def LA(qt): return 96 + qt * 4
    def Q(qt, ks): return 108 + (qt * 4 + ks) * 4
    def S(kt, qt): return 156 + (kt * 3 + qt) * 4
    ONES = 204
    def CI(qt): return 208 + qt * 4
    def F(i): return 220 + (i % NF) * 4
    b0 = 220 + NF * 4
    DK, DV = b0, b0 + 1
    KA = [b0 + 2 + i for i in range(4)]
    VA = [b0 + 6 + i for i in range(8)]
    TM = [b0 + 14 + i for i in range(3)]
    assert TM[-1] < 256
    def r4(b): return f"v[{b}:{b+3}]"
    def r2(b): return f"v[{b}:{b+1}]"
    SQ, SK, SV, SO = "s[4:7]", "s[8:11]", "s[12:15]", "s[16:19]"
    sW, sW4K, sK, sV, sIT, sH = "s20", "s21", "s22", "s23", "s24", "s25"
    sKV, sKVN, sQN, sOO, sC, sT0, sT1 = "s26", "s27", "s28", "s29", "s30", "s33", "s34"
    sM = "s[38:39]"; sMASK = "s41"; sSO = "s42"
    OOB = 0x40000000
    NQ, NK = 50331648, 134217728
    MF = "v_mfma_f32_16x16x32_bf16"
    uid = [0]
    def lab(p):
        uid[0] += 1
        return f"L_{p}_{uid[0]}"
    tail = []

    for ln in (
        "softmax(Q K^T / sqrt(128)) V, B=32 H=32 Sq=192 Sk=512 D=128, bf16 in / bf16 out (generated by the author's own script).",
        "kernarg: q, k, v, out, debug, ws (8 bytes each).",
        "512 workgroups x 4 waves, two per CU; each workgroup does two heads, each wave 48 query rows (three 16-row tiles).",
        "S^T = K Q^T and O^T = V^T P^T with v_mfma_f32_16x16x32_bf16, so a lane owns one query column throughout.",
        "LDS (80 KiB): 16 KiB slots K0 K1 V0 V1 filled by LDS-DMA two slots ahead (XOR-swizzled source addresses), one staging slot",
        "for the output; Q of the next head travels through the same slots.",
        "Softmax: log2(e)/sqrt(128) is folded into Q once per head; the first key tile uses the exact row max, later tiles reuse the",
        "running max and a per-tile check falls back to recomputing the tile with the true running max (L_redo) when any score",
        "exceeds it by more than 2^8; row sums come from an extra MFMA against a ones fragment.",
        ): L.append("; " + ln)
    L.append(f"; @launch grid=({nwg},1,1) block=(256,1,1) lds={LDS}")
    L.append('.amdgcn_target "amdgcn-amd-amdhsa--gfx950"')
    L.append(".text")
    L.append(f".globl {o.name}_kernel")
    L.append(".p2align 8")
    L.append(f".type {o.name}_kernel,@function")
    L.append(f"{o.name}_kernel:")
    e(f"s_cmp_ge_u32 s2, {nwg}")
    e("s_cbranch_scc1 L_end")
    if o.stamp:
        e("s_memrealtime s[48:49]")
        e("s_memtime s[50:51]")
        e("s_load_dwordx2 s[56:57], s[0:1], 40")
    e("s_load_dwordx4 s[36:39], s[0:1], 0")
    e("s_load_dwordx4 s[40:43], s[0:1], 16")
    e("v_and_b32 v9, 63, v0")
    e("v_lshrrev_b32 v1, 6, v0")
    e("v_and_b32 v2, 15, v9")
    e(f"v_readfirstlane_b32 {sW}, v1")
    e("v_lshrrev_b32 v3, 4, v9")
    e("v_lshrrev_b32 v4, 2, v2")
    e("v_and_b32 v5, 3, v2")
    e(f"s_lshl_b32 {sW4K}, {sW}, 12")
    e(f"s_lshl_b32 {sT0}, {sW}, 2")
    e("v_lshlrev_b32 v6, 8, v3")
    e(f"v_add_u32 v6, {sW4K}, v6")
    e(f"v_add_u32 v7, {sT0}, v3")
    e("v_xor_b32 v7, v7, v2")
    e(f"v_lshl_add_u32 v{DK}, v7, 4, v6")
    if o.xmap == 1:
        e(f"s_and_b32 {sT0}, s2, 7")
        e(f"s_lshl_b32 {sT0}, {sT0}, 6")
        e(f"s_lshr_b32 {sT1}, s2, 3")
        e(f"s_add_u32 {sT0}, {sT0}, {sT1}")
        e(f"s_lshl_b32 {sT0}, {sT0}, 1")
    else: e(f"s_mul_i32 {sT0}, s2, {o.nh}")
    e(f"s_lshl_b32 {sKVN}, {sT0}, 17")
    e(f"s_mul_i32 {sQN}, {sT0}, 49152")
    e(f"s_mov_b32 m0, {sW4K}")
    e(f"s_add_u32 {sT0}, {sQN}, {SLOT}")
    e(f"s_add_u32 {sT1}, {sQN}, {2*SLOT}")
    e("s_mov_b32 s6, " + str(NQ))
    e("s_mov_b32 s7, 0x20000")
    e("s_waitcnt lgkmcnt(0)")
    e("s_mov_b32 s4, s36")
    e("s_and_b32 s5, s37, 0xffff")
    def dma1(srd, soff, voff, j):
        off = f" offset:{1024*j}" if j else ""
        return f"buffer_load_dwordx4 v{voff}, {srd}, {soff} offen{off}{ntl} lds"
    def dma(srd, soff, voff):
        for j in range(4): e(dma1(srd, soff, voff, j))
    dma(SQ, sQN, DK)
    e(f"s_add_u32 m0, {sW4K}, {2*SLOT}")
    e("s_mov_b32 s8, s38")
    dma(SQ, sT0, DK)
    e(f"s_add_u32 m0, {sW4K}, {4*SLOT}")
    e("s_and_b32 s9, s39, 0xffff")
    dma(SQ, sT1, DK)
    e(f"s_mov_b32 s10, {NK}"); e("s_mov_b32 s11, 0x20000")
    for (b, p, n) in ((12, 40, NK), (16, 42, NQ)):
        e(f"s_mov_b32 s{b}, s{p}")
        e(f"s_and_b32 s{b+1}, s{p+1}, 0xffff")
        e(f"s_mov_b32 s{b+2}, {n}")
        e(f"s_mov_b32 s{b+3}, 0x20000")
    e(f"s_and_b32 {sT0}, {sW}, 1")
    e(f"s_lshl_b32 {sT0}, {sT0}, 2")
    e(f"v_add_u32 v7, {sT0}, v3")
    e("v_lshlrev_b32 v7, 1, v7")
    e("v_xor_b32 v7, v7, v2")
    e(f"v_lshl_add_u32 v{DV}, v7, 4, v6")
    e("v_lshlrev_b32 v6, 12, v4")
    e("v_lshl_add_u32 v6, v5, 8, v6")
    e("v_xor_b32 v7, v3, v2")
    e(f"v_lshl_add_u32 v{KA[0]}, v7, 4, v6")
    for ks in range(1, 4): e(f"v_xor_b32 v{KA[ks]}, {ks<<6}, v{KA[0]}")
    e("v_lshlrev_b32 v6, 12, v3")
    e("v_lshl_add_u32 v6, v4, 8, v6")
    e("v_and_b32 v7, 1, v3")
    e("v_lshl_add_u32 v7, v7, 2, v4")
    e("v_lshlrev_b32 v7, 1, v7")
    e("v_lshrrev_b32 v8, 1, v5")
    e("v_xor_b32 v7, v7, v8")
    e("v_lshl_add_u32 v6, v7, 4, v6")
    e("v_and_b32 v8, 1, v2")
    e("v_lshl_add_u32 v6, v8, 3, v6")
    e(f"v_add_u32 v{VA[0]}, {3*SLOT}, v6")
    for T in range(1, 8): e(f"v_xor_b32 v{VA[T]}, {T<<5}, v{VA[0]}")
    for i in range(4): e(f"v_mov_b32 v{ONES+i}, 0x3f803f80")
    e(f"s_add_u32 {sK}, {sW4K}, {SLOT}")
    e(f"s_add_u32 {sV}, {sW4K}, {3*SLOT}")
    e(f"s_mov_b32 {sC}, {hex(f2u(math.log2(math.e) / math.sqrt(128.0)))}")
    e(f"s_mov_b32 {sMASK}, 0x40004000")
    e(f"s_mov_b32 {sH}, 0")
    e(f"s_mov_b32 {sOO}, {OOB}")
    if o.stamp:
        e("s_mov_b32 s61, 0"); e("s_mov_b32 s62, 0")
    if o.prio == 1:
        e("s_setprio 3"); e("s_mov_b32 s31, 0"); e(f"s_mov_b32 s32, {o.pth.split(',')[0]}")
    if o.nanfill:
        for i in range(108): e(f"v_mov_b32 v{i}, 0x7fc00000")
    def tr():
        if not o.trace: return []
        return ["s_memrealtime s[66:67]", "s_memtime s[68:69]", "s_waitcnt lgkmcnt(0)", "s_mov_b32 s71, m0", "s_mov_b32 m0, s70", "s_nop 0",
                f"v_writelane_b32 v{TM[2]}, s66, m0", "s_add_u32 m0, s70, 32", "s_nop 0", f"v_writelane_b32 v{TM[2]}, s68, m0", "s_mov_b32 m0, s71", "s_add_u32 s70, s70, 1"]
    if o.trace:
        e("s_mov_b32 s70, 0")
        e(f"v_mov_b32 v{TM[2]}, 0")

    def allreduce(op, x, t):
        for a, b in zip(x, t): e(f"v_mov_b32 v{b}, v{a}")
        e("s_nop 1")
        for a, b in zip(x, t): e(f"v_permlane16_swap_b32 v{a}, v{b}")
        for a, b in zip(x, t): e(f"{op} v{a}, v{a}, v{b}")
        for a, b in zip(x, t): e(f"v_mov_b32 v{b}, v{a}")
        e("s_nop 1")
        for a, b in zip(x, t): e(f"v_permlane32_swap_b32 v{a}, v{b}")
        for a, b in zip(x, t): e(f"{op} v{a}, v{a}, v{b}")

    class LQ:
        def __init__(s, pre=()): s.q = list(pre)
        def read(s, tag): s.q.append(tag); assert len(s.q) <= 15, s.q
        def wait(s, tag):
            if tag not in s.q: return None
            i = len(s.q) - 1 - s.q[::-1].index(tag)
            n = len(s.q) - 1 - i
            s.q = s.q[i + 1:]
            return f"s_waitcnt lgkmcnt({n})"
    def short(text):
        c = hazard.I(text, 0); d = 0; miss = 0
        for ln in reversed(L):
            t = ln.strip()
            if t.endswith(":"): continue
            if t.startswith("s_branch") or t.startswith("s_endpgm") or d >= 13: break
            p = hazard.I(t, 0)
            miss = max(miss, hazard.need(p, c) - d)
            d += p.states
        return miss
    def safe_e(x):
        m = short(x)
        if m > 0: e(f"s_nop {m-1}")
        e(x)
    def weave(spine, fillers, bud, lq, bud2=None):
        q = list(fillers); j = -1; credit = 0
        for s in spine:
            if s[0] == "r": lq.read(s[1]); e(s[2]); continue
            if s[0] == "x":
                for x in s[1]: e(x)
                if o.trace and any("lgkmcnt(0)" in x for x in s[1]): lq.q = []
                continue
            if s[0] == "w":
                w = lq.wait(s[1])
                if w: e(w)
                continue
            dl = [i for i, x in enumerate(q) if x[1] == "DEADLINE" and x[0] <= j + 1]
            if dl:
                for _, ins in q[:dl[-1] + 1]:
                    if ins == "DEADLINE": continue
                    for x in (ins if isinstance(ins, list) else [ins]): safe_e(x)
                q = q[dl[-1] + 1:]
            safe_e(s[1])
            j += 1
            if bud2 and j >= bud2[0]: bud = bud2[1]
            credit += bud
            while q and (q[0][0] <= j or q[0][1] == "DEADLINE") and credit > 0:
                if q[0][1] == "DEADLINE": q.pop(0); continue
                ins = q[0][1] if isinstance(q[0][1], list) else [q[0][1]]
                if short(ins[0]) > o.maxnop: break
                q.pop(0)
                for x in ins:
                    safe_e(x); credit -= cost(x)
            credit = min(credit, bud)
        for _, ins in q:
            if ins == "DEADLINE": continue
            for x in (ins if isinstance(ins, list) else [ins]): safe_e(x)

    def kread(f):
        kt, ks = f >> 2, f & 3
        off = f" offset:{kt*1024}" if kt else ""
        return [("r", f"K{f}", f"ds_read_b128 {r4(F(f))}, v{KA[ks]}{off}")]
    def vread(f):
        u, T = f >> 3, f & 7
        r = []
        for ee in range(2):
            off = 2048 * u + 1024 * ee
            offs = f" offset:{off}" if off else ""
            r.append(("r", f"V{f}", f"ds_read_b64_tr_b16 {r2(F(f)+2*ee)}, v{VA[T]}{offs}"))
        return r
    KTAGS = [f"K{f}" for f in range(NF)]
    VTAGS = [f"V{f}" for f in range(NF) for _ in range(2)]
    def emit_reads(lst):
        for x in lst: e(x[2])
    def phase(n, group, own, nxt, sync, late=None):
        sp = []
        for f in range(16):
            if not o.wpair: sp.append(("w", f"{n}{f}"))
            elif f % 2 == 0: sp.append(("w", f"{n}{f+1}"))
            sp += group(f)
            if f + NF < 16: sp += own(f + NF)
            if late and f == late[0]: sp.append(("x", late[1]))
            if nxt and o.early:
                if f == 12: sp.append(("x", sync))
                if f >= 12: sp += nxt(f - 12)
                if f == 15:
                    for j in range(4, NF): sp += nxt(j)
        return sp
    def kgroup_(init):
        def g(f):
            kt, ks = f >> 2, f & 3
            return [("m", f"{MF} {r4(S(kt,qt))}, {r4(F(f))}, {r4(Q(qt,ks))}, {(r4(CI(qt)) if init else '0') if ks == 0 else r4(S(kt, qt))}") for qt in range(3)]
        return g
    kgroup = kgroup_(False); kgroup_i = kgroup_(True)
    def vgroup(zero):
        def g(f):
            u, T = f >> 3, f & 7
            return [("m", f"{MF} {r4(O(T,qt))}, {r4(F(f))}, {r4(S(2*u,qt))}, {'0' if zero and u == 0 else r4(O(T,qt))}") for qt in range(3)]
        return g
    def fma(kt, qt): return [f"v_add_f32 v{S(kt,qt)+i}, v{S(kt,qt)+i}, v{CI(qt)}" for i in range(4)]
    def exp(kt, qt): return [f"v_exp_f32 v{S(kt,qt)+i}, v{S(kt,qt)+i}" for i in range(4)]
    def cvt(kt, qt):
        b = S(kt & ~1, qt) + 2 * (kt & 1); s = S(kt, qt)
        return [f"v_cvt_pk_bf16_f32 v{b}, v{s}, v{s+1}", f"v_cvt_pk_bf16_f32 v{b+1}, v{s+2}, v{s+3}"]
    def lsum0(kt, qt):
        b = S(kt, qt); t = LA(qt) + 1
        if not o.ladd: return []
        if kt == 0: return [f"v_add_f32 v{t}, v{b}, v{b+1}", f"v_add_f32 v{t}, v{t}, v{b+2}", f"v_add_f32 v{t}, v{t}, v{b+3}"]
        return [f"v_add_f32 v{t}, v{t}, v{b+i}" for i in range(4)]
    def lsum1(kt, qt):
        b = S(kt, qt); t = LA(qt) + (kt & 1)
        return [f"v_add_f32 v{t}, v{t}, v{b+i}" for i in range(4)] if o.ladd else []
    def vsync(vm, part="all"):
        sp_l = lab("vr"); back = lab("vb")
        h = [f"s_mov_b32 m0, {sV}", f"s_xor_b32 {sV}, {sV}, {SLOT}", f"s_lshl_b32 {sSO}, {sIT}, 14", f"s_add_u32 {sSO}, {sSO}, {sKV}"]
        h += [f"s_cmp_eq_u32 {sIT}, 7"] if part == "all" else []
        if o.deep and vm == 4:
            w1, wb = lab("vw"), lab("vwb")
            h = h[:4] + [f"s_cmp_eq_u32 {sIT}, 1", f"s_cbranch_scc1 {w1}", "s_waitcnt vmcnt(4)", f"{wb}:"] + h[4:]
            tail.append([f"{w1}:", "s_waitcnt vmcnt(16)", f"s_branch {wb}"])
        else: h += [f"s_waitcnt vmcnt({vm})"]
        h += ["s_barrier"] + ([] if o.early else [x[2] for f in range(NF) for x in vread(f)]) + tr()
        if part == "head": return h
        r = ([f"s_cmp_eq_u32 {sIT}, 7"] if o.trace or part == "refill" else []) + [f"s_cbranch_scc1 {sp_l}"]
        if not o.nodma: r += [dma1(SV, sSO, DV, j) for j in range(4)]
        r += [f"{back}:"]
        tail.append([f"{sp_l}:", f"s_add_u32 {sT0}, {sQN}, {SLOT}"] + [dma1(SQ, sT0, DK, j) for j in range(4)]
                    + [f"s_add_u32 m0, {sW4K}, {4*SLOT}", f"s_add_u32 {sT0}, {sQN}, {2*SLOT}"] + [dma1(SQ, sT0, DK, j) for j in range(4)] + [f"s_branch {back}"])
        return r if part == "refill" else h + r
    def ksync(part="all"):
        sp_l = lab("kr"); back = lab("kb")
        h = [f"s_cmp_eq_u32 {sIT}, 8", f"s_cbranch_scc1 {back}"] if o.early else []
        h += [f"s_mov_b32 m0, {sK}", f"s_xor_b32 {sK}, {sK}, {SLOT}", f"s_lshl_b32 {sSO}, {sIT}, 14", f"s_add_u32 {sSO}, {sSO}, {sKV}"]
        h += [f"s_cmp_eq_u32 {sIT}, 7"] if part == "all" else []
        if part == "refill": pass
        elif o.deep:
            w1, wb = lab("kw"), lab("kwb")
            h = h[:-1 if part == "all" else None] + [f"s_cmp_eq_u32 {sIT}, 1", f"s_cbranch_scc1 {w1}", "s_waitcnt vmcnt(4)", f"{wb}:"] + (h[-1:] if part == "all" else [])
            tail.append([f"{w1}:", "s_waitcnt vmcnt(16)", f"s_branch {wb}"])
        else: h += ["s_waitcnt vmcnt(4)"]
        h += ["s_barrier"] + ([] if o.early else [x[2] for f in range(NF) for x in kread(f)]) + tr()
        if part == "head": return h + ([f"{back}:"] + (["s_waitcnt lgkmcnt(0)"] if o.trace else []) if o.early else [])
        r = ([f"s_cmp_eq_u32 {sIT}, 7"] if o.trace or part == "refill" else []) + [f"s_cbranch_scc1 {sp_l}"]
        if not o.nodma: r += [dma1(SK, sSO, DK, j) for j in range(4)]
        r += [f"{back}:"]
        if o.trace and o.early and part == "all": r += ["s_waitcnt lgkmcnt(0)"]
        tail.append([f"{sp_l}:"] + [dma1(SQ, sQN, DK, j) for j in range(4)] + [f"s_branch {back}"])
        return r if part == "refill" else h + r

    def emit_body(sfx):
        del tail[:]
        e(f"L_head{sfx}:")
        X = [S(0, 0) + i for i in range(16)]
        AX = [S(2, 0) + i for i in range(12)]
        e(f"v_mbcnt_lo_u32_b32 v{X[8]}, -1, 0")
        e(f"v_mbcnt_hi_u32_b32 v{X[8]}, -1, v{X[8]}")
        e(f"v_and_b32 v{X[0]}, 15, v{X[8]}")
        e(f"v_lshrrev_b32 v{X[1]}, 4, v{X[8]}")
        e(f"v_lshlrev_b32 v{X[3]}, 8, v{X[0]}")
        e(f"s_lshl_b32 {sT0}, {sW}, 2")
        e(f"v_and_b32 v{X[2]}, 3, v{X[0]}")
        e(f"v_add_u32 v{X[2]}, {sT0}, v{X[2]}")
        e(f"v_xor_b32 v{X[2]}, v{X[2]}, v{X[1]}")
        e(f"v_lshl_add_u32 v{X[9]}, v{X[2]}, 4, v{X[3]}")
        e(f"v_add_u32 v{X[9]}, {sW4K}, v{X[9]}")
        for ks in range(1, 4): e(f"v_xor_b32 v{AX[ks]}, {ks<<6}, v{X[9]}")
        e(f"s_cmp_eq_u32 {sH}, {o.nh}")
        e(f"s_cbranch_scc1 L_last{sfx}")
        if o.deep: e("s_barrier")
        for j in range(3):
            qpos = [0, 2, 4][j]
            if j == 2:
                for a in [X[9]] + AX[1:4]: e(f"v_add_u32 v{a}, {4*SLOT}, v{a}")
            e("s_waitcnt vmcnt(8)")
            for ks in range(4): e(f"ds_read_b128 {r4(Q(j,ks))}, v{X[9] if ks == 0 else AX[ks]} offset:{(qpos & 3)*SLOT}")
            if j < 2:
                e(f"s_add_u32 m0, {sW4K}, {qpos*SLOT}")
                e("s_waitcnt lgkmcnt(0)")
                dma(SK if j == 0 else SV, sKVN, DK if j == 0 else DV)
            else:
                if o.deep:
                    e(f"s_add_u32 m0, {sW4K}, {SLOT}")
                    e(f"s_add_u32 {sT0}, {sKVN}, {SLOT}")
                    dma(SK, sT0, DK)
                    e(f"s_add_u32 m0, {sW4K}, {3*SLOT}")
                    e("s_nop 0")
                    dma(SV, sT0, DV)
                e("s_waitcnt lgkmcnt(0)")
            for r in (range(48) if j == 2 else []) if o.psl else range(16 * j, 16 * j + 16):
                q = Q(0, 0) + r; t0 = CI(0) + 2 * (r % 3); t1 = t0 + 1
                e(f"v_lshlrev_b32 v{t0}, 16, v{q}")
                e(f"v_and_b32 v{t1}, 0xffff0000, v{q}")
                e(f"v_mul_f32 v{t0}, {sC}, v{t0}")
                e(f"v_mul_f32 v{t1}, {sC}, v{t1}")
                e(f"v_cvt_pk_bf16_f32 v{q}, v{t0}, v{t1}")
        if o.skip0:
            e(f"s_cmp_eq_u32 {sH}, 0")
            e(f"s_cbranch_scc1 L_first{sfx}")
            tail.append([f"L_first{sfx}:"] + [f"buffer_store_dwordx4 {r4(F(0))}, v{X[9]}, {SO}, {sOO} offen{nts}"] * 12 + [f"s_branch L_ohead{sfx}"])
        def oproc(pol):
            if o.ladd: allreduce("v_add_f32", [LA(j) for j in range(3)], [LA(j) + 1 for j in range(3)])
            for j in range(0 if o.vlast else 3): e(f"v_rcp_f32 v{X[13+j]}, v{LA(j)}")
            e(f"s_add_u32 {sT1}, {sW4K}, {4*SLOT}")
            e(f"v_lshrrev_b32 v{X[2]}, 1, v{X[1]}")
            e(f"v_xor_b32 v{X[2]}, v{X[2]}, v{X[0]}")
            e(f"v_lshl_add_u32 v{X[2]}, v{X[2]}, 4, v{X[3]}")
            e(f"v_and_b32 v{X[5]}, 1, v{X[1]}")
            e(f"v_lshl_add_u32 v{X[6]}, v{X[5]}, 3, v{X[2]}")
            e(f"v_add_u32 v{AX[4]}, {sT1}, v{X[6]}")
            for T in range(1, 8): e(f"v_xor_b32 v{AX[4+T]}, {T<<5}, v{AX[4]}")
            e(f"v_xor_b32 v{X[2]}, v{X[0]}, v{X[1]}")
            e(f"v_lshlrev_b32 v{X[2]}, 4, v{X[2]}")
            e(f"v_lshl_add_u32 v{X[7]}, v{X[1]}, 8, v{X[2]}")
            e(f"v_add_u32 v{AX[0]}, {sT1}, v{X[7]}")
            for jj in range(1, 4): e(f"v_xor_b32 v{AX[jj]}, {jj<<6}, v{AX[0]}")
            e(f"v_lshlrev_b32 v{X[12]}, 4, v{X[8]}")
            e(f"v_add_u32 v{X[12]}, {sW4K}, v{X[12]}")
            RB = [[F(jj) for jj in range(4)], [S(1,1), S(1,2), S(3,0), S(3,1)], [F(jj) for jj in range(4)]]
            def norm(j):
                if o.vlast: return
                for T in range(8):
                    b = O(T, j)
                    for i in range(4): e(f"v_mul_f32 v{b+i}, v{b+i}, v{X[13+j]}")
                for T in range(8):
                    b = O(T, j)
                    e(f"v_cvt_pk_bf16_f32 v{b}, v{b}, v{b+1}")
                    e(f"v_cvt_pk_bf16_f32 v{b+1}, v{b+2}, v{b+3}")
            def stage(j):
                for T in range(8): e(f"ds_write_b64 v{AX[4+T]}, {r2(O(T, j))}")
                for jj in range(4): e(f"ds_read_b128 {r4(RB[j][jj])}, v{AX[jj]} offset:{jj*1024}")
            def store(j):
                e(f"s_add_u32 {sT0}, {sOO}, {j*SLOT}")
                for jj in range(4):
                    e(f"s_waitcnt lgkmcnt({3-jj})")
                    e(f"buffer_store_dwordx4 {r4(RB[j][jj])}, v{X[12]}, {SO}, {sT0} offen offset:{jj*1024}{pol}")
            norm(0); e("s_waitcnt lgkmcnt(0)"); stage(0); norm(1); store(0); stage(1); norm(2); store(1); stage(2); store(2)
        oproc(nts)
        e(f"L_ohead{sfx}:")
        e(f"s_mov_b32 {sOO}, {sQN}")
        e(f"s_add_u32 {sKV}, {sKVN}, {SLOT}")
        e(f"s_add_u32 {sH}, {sH}, 1")
        e(f"s_add_u32 {sKVN}, {sKVN}, 131072")
        e(f"s_add_u32 {sQN}, {sQN}, 49152")
        e(f"s_cmp_eq_u32 {sH}, {o.nh}")
        e(f"s_cselect_b32 {sKVN}, {OOB}, {sKVN}")
        e(f"s_cselect_b32 {sQN}, {OOB}, {sQN}")
        e(f"s_mov_b32 {sIT}, 0")
        if o.stamp:
            e("s_mov_b32 s61, s62")
            e("s_memrealtime s[62:63]")
            e("s_waitcnt lgkmcnt(0)")

        e(f"s_mov_b32 m0, {sK}")
        e(f"s_xor_b32 {sK}, {sK}, {SLOT}")
        for T in range(8): e(f"v_xor_b32 v{VA[T]}, {SLOT}, v{VA[T]}")
        e(f"s_waitcnt vmcnt({24 if o.deep else 16})")
        e("s_barrier")
        for x in tr(): e(x)
        for f in range(NF): emit_reads(kread(f))
        if not o.deep: dma(SK, sKV, DK)
        LM = [CI(qt) + 1 for qt in range(3)]; T1 = [CI(qt) + 2 for qt in range(3)]
        vals = [[S(kt, qt) + i for kt in range(4) for i in range(4)] for qt in range(3)]
        def rowmax():
            for qt in range(3):
                v = vals[qt]; safe_e(f"v_max3_f32 v{LM[qt]}, v{v[0]}, v{v[1]}, v{v[2]}")
            for k in range(6):
                for qt in range(3):
                    v = vals[qt]; safe_e(f"v_max3_f32 v{LM[qt]}, v{LM[qt]}, v{v[3+2*k]}, v{v[4+2*k]}")
            for qt in range(3): safe_e(f"v_max_f32 v{LM[qt]}, v{LM[qt]}, v{vals[qt][15]}")
            allreduce("v_max_f32", LM, T1)
            for qt in range(3): e(f"v_sub_f32 v{LM[qt]}, 0xc0e00000, v{LM[qt]}")
        def spread():
            for qt in range(3):
                for i in (0, 2, 3): e(f"v_mov_b32 v{CI(qt)+i}, v{LM[qt]}")
        def half0():
            for qt in range(3):
                for kt in range(4):
                    for s in fma(kt, qt): e(s)
            for qt in range(3):
                for kt in range(4 if o.allk else 2):
                    for s in exp(kt, qt): e(s)
            for qt in range(3):
                for kt in range(2):
                    for s in lsum0(kt, qt): e(s)
            for qt in range(3):
                for kt in range(4 if o.allk else 2):
                    for s in cvt(kt, qt): e(s)
        def rescale():
            for qt in range(3): e(f"v_min_f32 v{LM[qt]}, v{LM[qt]}, v{CI(qt)}")
            for qt in range(3): e(f"v_sub_f32 v{T1[qt]}, v{LM[qt]}, v{CI(qt)}")
            for qt in range(3): e(f"v_exp_f32 v{T1[qt]}, v{T1[qt]}")
            e("s_nop 0")
            for qt in range(3):
                for i in range(1 if o.ladd else 4): e(f"v_mul_f32 v{LA(qt)+i}, v{LA(qt)+i}, v{T1[qt]}")
            for T in range(8):
                for qt in range(3):
                    for i in range(4): e(f"v_mul_f32 v{O(T,qt)+i}, v{O(T,qt)+i}, v{T1[qt]}")
        weave(phase("K", kgroup, kread, vread, vsync(16, "head" if o.vdma >= 0 else "all") if o.early else None), [], 0, LQ(KTAGS))
        rowmax()
        spread()
        half0()

        sG, sTH = "s31", "s32"
        def prio_step():
            if o.prio != 1: return
            th = [int(x) for x in o.pth.split(",")]
            pl = lab("pp"); pb = lab("pb")
            e(f"s_add_u32 {sG}, {sG}, 1")
            e(f"s_cmp_eq_u32 {sG}, {sTH}")
            e(f"s_cbranch_scc1 {pl}")
            e(f"{pb}:")
            a, b = lab("pa"), lab("pa")
            tail.append([f"{pl}:", f"s_cmp_eq_u32 {sG}, {th[0]}", f"s_cbranch_scc1 {a}", f"s_cmp_eq_u32 {sG}, {th[1]}", f"s_cbranch_scc1 {b}",
                         "s_setprio 0", f"s_branch {pb}", f"{a}:", "s_setprio 2", f"s_mov_b32 {sTH}, {th[1]}", f"s_branch {pb}",
                         f"{b}:", "s_setprio 1", f"s_mov_b32 {sTH}, {th[2]}", f"s_branch {pb}"])
        def vstep(zero, last=False):
            def lm(u): return [("m", f"{MF} {r4(LA(qt))}, {r4(ONES)}, {r4(S(2*u,qt))}, {'0' if zero and u == 0 else r4(LA(qt))}") for qt in range(3)]
            assert not (o.deep and o.early)
            late = (o.vdma, vsync(0, "refill")) if o.vdma >= 0 and not (zero and o.deep) else None
            assert o.vdma < 9
            if o.ladd: sp = phase("V", vgroup(zero), vread, kread, ksync("head" if o.kdma >= 0 else "all") if o.early else None, late); B = 24
            else: sp = lm(0) + phase("V", vgroup(zero), vread, kread, ksync("head" if o.kdma >= 0 else "all") if o.early else None, late) + lm(1); B = 27
            if last:
                assert not o.ladd and not o.early
                ph_ = phase("V", vgroup(False), vread, None, None, late)
                mi = [i for i, x in enumerate(ph_) if x[0] == "m"]
                sp = lm(0) + ph_[:mi[24]] + lm(1) + ph_[mi[24]:]
            if not o.early:
                for x in vsync((20 if o.deep else 16) if zero else 4, "head" if late or (zero and o.deep) else "all"): e(x)
            fl = []
            if o.ladd:
                for qt in range(3): fl.append((0, f"v_mov_b32 v{LA(qt)}, v{LA(qt)+1}" if zero else f"v_add_f32 v{LA(qt)}, v{LA(qt)}, v{LA(qt)+1}"))
            def l1(kt, qt):
                if not o.ladd: return []
                b = S(kt, qt)
                return [f"v_add_f32 v{LA(qt)}, v{LA(qt)}, v{b+i}" for i in range(4)]
            for lst in () if o.allk else (exp(2,0), exp(3,0), l1(2,0), exp(2,1), cvt(2,0), exp(3,1), cvt(3,0), l1(2,1), exp(2,2), cvt(2,1), exp(3,2), cvt(3,1), l1(2,2), cvt(2,2), cvt(3,2)):
                for s in lst: fl.append((0, s))
            fl.append((B, "DEADLINE"))
            for qt in range(3):
                for s in l1(3, qt): fl.append((0, s))
            if last:
                for ks in range(4): fl.append((B + ks, f"v_xor_b32 v{KA[ks]}, {SLOT}, v{KA[ks]}"))
                for qt in range(3): fl.append((B + 3 + qt, f"v_rcp_f32 v{CI(qt)}, v{LA(qt)}"))
                for T in range(8):
                    for qt in range(3):
                        b = O(T, qt)
                        for i in range(4): fl.append((B + 3 + 3*T + qt + 1, f"v_mul_f32 v{b+i}, v{b+i}, v{CI(qt)}"))
                        fl.append((0, f"v_cvt_pk_bf16_f32 v{b}, v{b}, v{b+1}"))
                        fl.append((0, f"v_cvt_pk_bf16_f32 v{b+1}, v{b+2}, v{b+3}"))
                weave(sp, fl, o.vbud, LQ(VTAGS if not o.trace else []), (B + 3, o.lbud))
                return
            for ks in range(4): fl.append((B + ks, f"v_xor_b32 v{KA[ks]}, {SLOT}, v{KA[ks]}"))
            fl.append((B + 5, f"s_add_u32 {sIT}, {sIT}, 1"))
            fl.append((B + 12, "DEADLINE"))
            weave(sp, fl, o.vbud, LQ(VTAGS if not o.trace else []))
        vstep(True)
        prio_step()

        e(f"L_kfast{sfx}:")
        klate = (o.kdma, ksync("refill")) if o.kdma >= 0 else None
        if not o.early:
            for x in ksync("head" if klate else "all"): e(x)
        fl = []
        if o.xfirst:
            for T in range(8): e(f"v_xor_b32 v{VA[T]}, {SLOT}, v{VA[T]}")
        else:
            for T in range(8): fl.append((3 + T, f"v_xor_b32 v{VA[T]}, {SLOT}, v{VA[T]}"))
        fl.append((36, "DEADLINE"))
        def add(pos, lst):
            for s in lst: fl.append((pos, s))
        def at(kt, qt): return 12 * kt + 9 + qt + 2
        add(at(0,0), exp(0,0)); add(at(0,1), exp(0,1)); add(0, lsum0(0,0)); add(0, cvt(0,0)); add(at(0,2), exp(0,2)); add(0, lsum0(0,1)); add(0, cvt(0,1))
        add(at(1,0), exp(1,0)); add(0, lsum0(0,2)); add(0, cvt(0,2)); add(at(1,1), exp(1,1)); add(0, lsum0(1,0)); add(0, cvt(1,0)); add(at(1,2), exp(1,2)); add(0, lsum0(1,1)); add(0, cvt(1,1))
        OR, MX = TM[0], TM[1]
        P0 = [S(0, qt) + i for qt in range(3) for i in range(4)]
        add(0, [f"v_or3_b32 v{OR}, v{P0[0]}, v{P0[1]}, v{P0[2]}", f"v_or3_b32 v{OR}, v{OR}, v{P0[3]}, v{P0[4]}"])
        add(0, lsum0(1,2)); add(0, cvt(1,2))
        add(0, [f"v_or3_b32 v{OR}, v{OR}, v{P0[5]}, v{P0[6]}", f"v_or3_b32 v{OR}, v{OR}, v{P0[7]}, v{P0[8]}", f"v_or3_b32 v{OR}, v{OR}, v{P0[9]}, v{P0[10]}"])
        add(0, [f"v_or_b32 v{OR}, v{OR}, v{P0[11]}"])
        if o.allk:
            assert not o.ladd
            P1 = [S(2, qt) + i for qt in range(3) for i in range(4)]
            add(at(2,0), exp(2,0)); add(at(2,1), exp(2,1)); add(0, cvt(2,0)); add(at(2,2), exp(2,2)); add(0, cvt(2,1))
            add(at(3,0), exp(3,0)); add(0, cvt(2,2)); add(at(3,1), exp(3,1)); add(0, cvt(3,0)); add(at(3,2), exp(3,2)); add(0, cvt(3,1))
            for k in range(4): add(0, [f"v_or3_b32 v{OR}, v{OR}, v{P1[2*k]}, v{P1[2*k+1]}"])
            add(0, cvt(3,2))
            for k in range(4, 6): add(0, [f"v_or3_b32 v{OR}, v{OR}, v{P1[2*k]}, v{P1[2*k+1]}"])
            add(0, [f"v_and_b32 v{OR}, {sMASK}, v{OR}"])
        else:
            x2 = [S(2, qt) + i for qt in range(3) for i in range(4)]
            x3 = [S(3, qt) + i for qt in range(3) for i in range(4)]
            add(at(2,0), [f"v_max3_f32 v{MX}, v{x2[0]}, v{x2[1]}, v{x2[2]}"])
            add(0, [f"v_and_b32 v{OR}, {sMASK}, v{OR}"])
            add(at(2,2), [f"v_max3_f32 v{MX}, v{MX}, v{x2[3]}, v{x2[4]}"])
            add(0, [f"v_cmp_ne_u32 {sM}, 0, v{OR}"])
            for k in range(1, 4): add(o.xhold, [f"v_max3_f32 v{MX}, v{MX}, v{x2[3+2*k]}, v{x2[4+2*k]}"])
            xs = [x2[11]] + x3
            for k in range(6): add(99, [f"v_max3_f32 v{MX}, v{MX}, v{xs[2*k]}, v{xs[2*k+1]}"])
            add(99, [f"v_max_f32 v{MX}, v{MX}, v{xs[12]}"])
        weave(phase("K", kgroup_i, kread, vread, vsync(4, "head" if o.vdma >= 0 else "all") if o.early else None, klate), fl, o.kbud, LQ(KTAGS if not o.trace else []))
        if o.allk: e(f"v_cmp_ne_u32 vcc, 0, v{OR}")
        else:
            e(f"v_cmp_lt_f32 vcc, 1.0, v{MX}")
            e(f"s_or_b64 vcc, vcc, {sM}")
        if not o.nodma: e(f"s_cbranch_vccnz L_redo{sfx}")
        e(f"L_vstep{sfx}:")
        if o.vlast:
            e(f"s_cmp_eq_u32 {sIT}, 7")
            e(f"s_cbranch_scc1 L_vlast{sfx}")
        vstep(False)
        prio_step()
        if o.vlast:
            e(f"s_branch L_kfast{sfx}")
            e(f"L_vlast{sfx}:")
            vstep(False, True)
            prio_step()
        else:
            e(f"s_cmp_lt_u32 {sIT}, 8")
            e(f"s_cbranch_scc1 L_kfast{sfx}")
        e("s_waitcnt lgkmcnt(0)")
        e(f"s_branch L_head{sfx}")

        e(f"L_redo{sfx}:")
        e("s_waitcnt lgkmcnt(0)")
        for f in range(NF): emit_reads(kread(f))
        weave(phase("K", kgroup, kread, vread, []), [], 0, LQ(KTAGS))
        rowmax()
        rescale()
        spread()
        half0()
        e(f"s_branch L_vstep{sfx}")
        e(f"L_last{sfx}:")
        e("s_waitcnt vmcnt(0)")
        oproc((" " + o.stpol2.replace("_", " ")) if o.stpol2 not in ("", "none") else "")
        e("s_branch L_fin")
        for blk in tail:
            for s in blk: e(s)
    if o.odd:
        base = dict(early=o.early, kdma=o.kdma, vdma=o.vdma)
        if not o.seq:
            e(f"s_getreg_b32 {sT0}, hwreg(HW_REG_XCC_ID)")
            e(f"s_and_b32 {sT0}, {sT0}, 1")
            e(f"s_cmp_eq_u32 {sT0}, {o.oddpar}")
            e("s_cbranch_scc1 L_init_b")
        emit_body("")
        if o.seq:
            i = L.index("    s_branch L_head"); L[i] = "    s_branch L_head_b"
        pr = o.odd.split(",")
        o.early, o.kdma, o.vdma = pr[0] == "1", int(pr[1]), int(pr[2])
        if len(pr) > 3: o.ladd, o.kbud, o.vbud = pr[3] == "1", int(pr[4]), int(pr[5])
        if len(pr) > 6: o.pth = pr[6].replace("/", ",")
        if len(pr) > 7: o.wpair = pr[7] == "1"; o.xfirst = False
        e("L_init_b:")
        e(f"s_mov_b32 s32, {o.pth.split(',')[0]}")
        emit_body("_b")
    else:
        emit_body("")
    e("L_fin:")
    if o.stamp:
        e("s_waitcnt vmcnt(0)")
        e("s_memrealtime s[52:53]")
        e("s_memtime s[54:55]")
        e("s_getreg_b32 s58, hwreg(HW_REG_XCC_ID)")
        e("s_getreg_b32 s59, hwreg(HW_REG_HW_ID)")
        e("s_waitcnt lgkmcnt(0)")
        e("s_lshl_b32 s60, s2, 2")
        e(f"s_add_u32 s60, s60, {sW}")
        e("s_lshl_b32 s60, s60, 5")
        e("v_mov_b32 v0, s48"); e("v_mov_b32 v1, s50"); e("v_mov_b32 v2, s52"); e("v_mov_b32 v3, s54")
        e("v_mov_b32 v4, s58"); e("v_mov_b32 v5, s59"); e("v_mov_b32 v6, s61"); e("v_mov_b32 v7, s62")
        e("v_mov_b32 v8, s60")
        e("global_store_dwordx4 v8, v[0:3], s[56:57]")
        e("global_store_dwordx4 v8, v[4:7], s[56:57] offset:16")
        if o.trace:
            e("v_mbcnt_lo_u32_b32 v9, -1, 0")
            e("v_mbcnt_hi_u32_b32 v9, -1, v9")
            e("s_lshl_b32 s60, s60, 3")
            e("s_add_u32 s60, s60, 0x200000")
            e("v_lshl_add_u32 v9, v9, 2, s60")
            e(f"global_store_dword v9, v{TM[2]}, s[56:57]")
    e("L_end:")
    e("s_endpgm")
    L.append('.section .rodata,"a"')
    L.append(".p2align 6")
    L.append(f".amdhsa_kernel {o.name}_kernel")
    L.append("  .amdhsa_next_free_vgpr 256")
    L.append(f"  .amdhsa_next_free_sgpr {96 if o.stamp else 48}")
    L.append("  .amdhsa_accum_offset 256")
    L.append("  .amdhsa_group_segment_fixed_size 0")
    L.append("  .amdhsa_kernarg_size 48")
    L.append("  .amdhsa_user_sgpr_count 2")
    L.append("  .amdhsa_user_sgpr_kernarg_segment_ptr 1")
    L.append("  .amdhsa_system_sgpr_workgroup_id_x 1")
    L.append(".end_amdhsa_kernel")
    return "\n".join(L) + "\n"

if __name__ == "__main__":
    o = Opt()
    out = sys.argv[1]
    for a in sys.argv[2:]:
        k, v = a.split("=")
        cur = getattr(o, k)
        setattr(o, k, (v in ("1", "True", "true")) if isinstance(cur, bool) else type(cur)(v))
    txt = gen(o)
    open(out, "w").write(txt)
    b, n = hazard.check(txt)
    print(f"{out}: {n} instrs, {b} hazards")
```

```python
import sys, math, struct
import hazard

def f2u(x):
    return struct.unpack("<I", struct.pack("<f", x))[0]

class Opt:
    ldpol = "nt"
    stpol = "sc1"
    nh = 2
    nwg = 0
    prio = 1
    pth = "4,8,12"
    stamp = False
    nanfill = False
    nf = 4
    lbud = 16
    kdma = -1
    vdma = -1
    split = True
    nodma = False
    name = "standalone__gqa_softmax__near_ridge"

def cost(s):
    return 8 if s.startswith("v_exp") or s.startswith("v_rcp") else 4

def gen(o):
    L = []
    def e(s=""):
        L.append("    " + s if s and not s.endswith(":") else s)
    nwg = o.nwg or 1024 // o.nh
    SLOT = 16384; LDS = 5 * SLOT
    ntl = (" " + o.ldpol.replace("_", " ")) if o.ldpol not in ("", "none") else ""
    nts = (" " + o.stpol.replace("_", " ")) if o.stpol not in ("", "none") else ""
    NF = o.nf
    def O(T, qt): return (T * 3 + qt) * 4
    def LA(qt): return 96 + qt * 4
    def Q(qt, ks): return 108 + (qt * 4 + ks) * 4
    def S(kt, qt): return 156 + (kt * 3 + qt) * 4
    ONES = 204
    def CI(qt): return 208 + qt * 4
    def F(i): return 220 + (i % NF) * 4
    b0 = 220 + NF * 4
    DK, DV = b0, b0 + 1
    KA = [b0 + 2 + i for i in range(4)]
    VA = [b0 + 6 + i for i in range(8)]
    LR = [b0 + 14 + i for i in range(3)]
    TM = b0 + 17
    assert TM < 256
    def r4(b): return f"v[{b}:{b+3}]"
    def r2(b): return f"v[{b}:{b+1}]"
    SQ, SK, SV, SO = "s[4:7]", "s[8:11]", "s[12:15]", "s[16:19]"
    sW, sW4K, sTILE, sIT, sH = "s20", "s21", "s22", "s24", "s25"
    sKVN, sQN, sOO, sC, sG, sTH, sT0, sT1, sLIM = "s27", "s28", "s29", "s30", "s31", "s32", "s33", "s34", "s35"
    OOB = 0x40000000
    NQ, NK = 50331648, 134217728
    MF = "v_mfma_f32_16x16x32_bf16"
    uid = [0]
    def lab(p):
        uid[0] += 1
        return f"L_{p}_{uid[0]}"
    tail = []

    for ln in (
        "softmax(Q K^T / sqrt(128)) V, B=32 H=32 Sq=192 Sk=512 D=128, bf16 in / bf16 out (written with the author's own generator script).",
        "kernarg: q, k, v, out, debug, ws (8 bytes each).",
        "512 workgroups x 4 waves, two per CU; each workgroup does two heads, each wave 48 query rows (three 16-row tiles).",
        "S^T = K Q^T and O^T = V^T P^T with v_mfma_f32_16x16x32_bf16, so a lane owns one query column throughout.",
        "LDS (80 KiB): 16 KiB slots K0 K1 V0 V1 filled by LDS-DMA two slots ahead (XOR-swizzled source addresses), one staging slot",
        "for the output; Q of the next head travels through the same slots.",
        "Softmax: log2(e)/sqrt(128) is folded into Q once per head; the first key tile uses the exact row max; later tiles reuse the",
        "running max, and a per-tile check of the row sums (an MFMA against a ones fragment) falls back to recomputing the tile",
        "with the true running max (L_redo*) before anything is accumulated whenever a probability could exceed 2^8.",
        ): L.append("; " + ln)
    L.append(f"; @launch grid=({nwg},1,1) block=(256,1,1) lds={LDS}")
    L.append('.amdgcn_target "amdgcn-amd-amdhsa--gfx950"')
    L.append(".text")
    L.append(f".globl {o.name}_kernel")
    L.append(".p2align 8")
    L.append(f".type {o.name}_kernel,@function")
    L.append(f"{o.name}_kernel:")
    e(f"s_cmp_ge_u32 s2, {nwg}")
    e("s_cbranch_scc1 L_end")
    if o.stamp:
        e("s_memrealtime s[48:49]")
        e("s_memtime s[50:51]")
        e("s_load_dwordx2 s[56:57], s[0:1], 40")
    e("s_load_dwordx4 s[36:39], s[0:1], 0")
    e("s_load_dwordx4 s[40:43], s[0:1], 16")
    e("v_and_b32 v9, 63, v0")
    e("v_lshrrev_b32 v1, 6, v0")
    e("v_and_b32 v2, 15, v9")
    e(f"v_readfirstlane_b32 {sW}, v1")
    e("v_lshrrev_b32 v3, 4, v9")
    e("v_lshrrev_b32 v4, 2, v2")
    e("v_and_b32 v5, 3, v2")
    e(f"s_lshl_b32 {sW4K}, {sW}, 12")
    e(f"s_lshl_b32 {sT0}, {sW}, 2")
    e("v_lshlrev_b32 v6, 8, v3")
    e(f"v_add_u32 v6, {sW4K}, v6")
    e(f"v_add_u32 v7, {sT0}, v3")
    e("v_xor_b32 v7, v7, v2")
    e(f"v_lshl_add_u32 v{DK}, v7, 4, v6")
    e(f"s_mul_i32 {sT0}, s2, {o.nh}")
    e(f"s_lshl_b32 {sKVN}, {sT0}, 17")
    e(f"s_mul_i32 {sQN}, {sT0}, 49152")
    e(f"s_mov_b32 m0, {sW4K}")
    e(f"s_add_u32 {sT0}, {sQN}, {SLOT}")
    e(f"s_add_u32 {sT1}, {sQN}, {2*SLOT}")
    e(f"s_mov_b32 s6, {NQ}")
    e("s_mov_b32 s7, 0x20000")
    e("s_waitcnt lgkmcnt(0)")
    e("s_mov_b32 s4, s36")
    e("s_and_b32 s5, s37, 0xffff")
    def dma1(srd, soff, voff, j):
        off = f" offset:{1024*j}" if j else ""
        return f"buffer_load_dwordx4 v{voff}, {srd}, {soff} offen{off}{ntl} lds"
    def dma(srd, soff, voff):
        for j in range(4): e(dma1(srd, soff, voff, j))
    dma(SQ, sQN, DK)
    e(f"s_add_u32 m0, {sW4K}, {2*SLOT}")
    e("s_mov_b32 s8, s38")
    dma(SQ, sT0, DK)
    e(f"s_add_u32 m0, {sW4K}, {4*SLOT}")
    e("s_and_b32 s9, s39, 0xffff")
    dma(SQ, sT1, DK)
    e(f"s_mov_b32 s10, {NK}"); e("s_mov_b32 s11, 0x20000")
    for (b, p, n) in ((12, 40, NK), (16, 42, NQ)):
        e(f"s_mov_b32 s{b}, s{p}")
        e(f"s_and_b32 s{b+1}, s{p+1}, 0xffff")
        e(f"s_mov_b32 s{b+2}, {n}")
        e(f"s_mov_b32 s{b+3}, 0x20000")
    e(f"s_and_b32 {sT0}, {sW}, 1")
    e(f"s_lshl_b32 {sT0}, {sT0}, 2")
    e(f"v_add_u32 v7, {sT0}, v3")
    e("v_lshlrev_b32 v7, 1, v7")
    e("v_xor_b32 v7, v7, v2")
    e(f"v_lshl_add_u32 v{DV}, v7, 4, v6")
    e("v_lshlrev_b32 v6, 12, v4")
    e("v_lshl_add_u32 v6, v5, 8, v6")
    e("v_xor_b32 v7, v3, v2")
    e(f"v_lshl_add_u32 v{KA[0]}, v7, 4, v6")
    for ks in range(1, 4): e(f"v_xor_b32 v{KA[ks]}, {ks<<6}, v{KA[0]}")
    e("v_lshlrev_b32 v6, 12, v3")
    e("v_lshl_add_u32 v6, v4, 8, v6")
    e("v_and_b32 v7, 1, v3")
    e("v_lshl_add_u32 v7, v7, 2, v4")
    e("v_lshlrev_b32 v7, 1, v7")
    e("v_lshrrev_b32 v8, 1, v5")
    e("v_xor_b32 v7, v7, v8")
    e("v_lshl_add_u32 v6, v7, 4, v6")
    e("v_and_b32 v8, 1, v2")
    e("v_lshl_add_u32 v6, v8, 3, v6")
    e(f"v_add_u32 v{VA[0]}, {2*SLOT}, v6")
    for T in range(1, 8): e(f"v_xor_b32 v{VA[T]}, {T<<5}, v{VA[0]}")
    for i in range(4): e(f"v_mov_b32 v{ONES+i}, 0x3f803f80")
    e(f"s_mov_b32 {sC}, {hex(f2u(math.log2(math.e) / math.sqrt(128.0)))}")
    e(f"s_mov_b32 {sLIM}, 0x43800000")
    e(f"s_mov_b32 {sH}, 0")
    e(f"s_mov_b32 {sOO}, {OOB}")
    if o.stamp:
        e("s_mov_b32 s61, 0"); e("s_mov_b32 s62, 0")
    th = [int(x) for x in o.pth.split(",")]
    if o.prio == 1:
        e("s_setprio 3"); e(f"s_mov_b32 {sG}, 0"); e(f"s_mov_b32 {sTH}, {th[0]}")
    if o.nanfill:
        for i in list(range(108)) + LR: e(f"v_mov_b32 v{i}, 0x7fc00000")

    def allreduce(op, x, t):
        for a, b in zip(x, t): e(f"v_mov_b32 v{b}, v{a}")
        e("s_nop 1")
        for a, b in zip(x, t): e(f"v_permlane16_swap_b32 v{a}, v{b}")
        for a, b in zip(x, t): e(f"{op} v{a}, v{a}, v{b}")
        for a, b in zip(x, t): e(f"v_mov_b32 v{b}, v{a}")
        e("s_nop 1")
        for a, b in zip(x, t): e(f"v_permlane32_swap_b32 v{a}, v{b}")
        for a, b in zip(x, t): e(f"{op} v{a}, v{a}, v{b}")
    class LQ:
        def __init__(s, pre=()): s.q = list(pre)
        def read(s, tag): s.q.append(tag); assert len(s.q) <= 15, s.q
        def wait(s, tag):
            if tag not in s.q: return None
            i = len(s.q) - 1 - s.q[::-1].index(tag)
            n = len(s.q) - 1 - i
            s.q = s.q[i + 1:]
            return f"s_waitcnt lgkmcnt({n})"
    def short(text):
        c = hazard.I(text, 0); d = 0; miss = 0
        for ln in reversed(L):
            t = ln.strip()
            if t.endswith(":"): continue
            if t.startswith("s_branch") or t.startswith("s_endpgm") or d >= 13: break
            p = hazard.I(t, 0)
            miss = max(miss, hazard.need(p, c) - d)
            d += p.states
        return miss
    def se(x):
        m = short(x)
        if m > 0: e(f"s_nop {m-1}")
        e(x)
    def run(spine, lq, fillers=(), bud=0):
        q = list(fillers); j = -1; credit = 0
        for s in spine:
            if s[0] == "r": lq.read(s[1]); e(s[2]); continue
            if s[0] == "x":
                for x in s[1]: se(x) if not x.endswith(":") else e(x)
                continue
            if s[0] == "w":
                w = lq.wait(s[1])
                if w: e(w)
                continue
            se(s[1]); j += 1; credit += bud
            while q and q[0][0] <= j and credit > 0 and short(q[0][1]) <= 1:
                x = q.pop(0)[1]; se(x); credit -= cost(x)
            credit = min(credit, bud)
        for _, x in q: se(x)
    def kread(f, p):
        kt, ks = f >> 2, f & 3
        off = kt * 1024 + p * SLOT
        return [("r", f"K{f}", f"ds_read_b128 {r4(F(f))}, v{KA[ks]}" + (f" offset:{off}" if off else ""))]
    def vread(f, p):
        u, T = f >> 3, f & 7
        r = []
        for ee in range(2):
            off = 2048 * u + 1024 * ee + p * SLOT
            r.append(("r", f"V{f}", f"ds_read_b64_tr_b16 {r2(F(f)+2*ee)}, v{VA[T]}" + (f" offset:{off}" if off else "")))
        return r
    KTAGS = [f"K{f}" for f in range(NF)]
    VTAGS = [f"V{f}" for f in range(NF) for _ in range(2)]
    def pre(rd, p):
        for f in range(NF):
            for x in rd(f, p): e(x[2])
    def phase(n, group, own, p, extra={}):
        sp = []
        for f in range(16):
            if f in extra.get("before", {}): sp.append(("x", extra["before"][f]))
            sp.append(("w", f"{n}{f}"))
            sp += group(f)
            if f + NF < 16: sp += own(f + NF, p)
            if f in extra.get("after", {}): sp.append(("x", extra["after"][f]))
        return sp
    def kgroup(init):
        def g(f):
            kt, ks = f >> 2, f & 3
            return [("m", f"{MF} {r4(S(kt,qt))}, {r4(F(f))}, {r4(Q(qt,ks))}, {(r4(CI(qt)) if init else '0') if ks == 0 else r4(S(kt, qt))}") for qt in range(3)]
        return g
    def vgroup(zero):
        def g(f):
            u, T = f >> 3, f & 7
            return [("m", f"{MF} {r4(O(T,qt))}, {r4(F(f))}, {r4(S(2*u,qt))}, {'0' if zero and u == 0 else r4(O(T,qt))}") for qt in range(3)]
        return g
    def exp(kt, qt): return [f"v_exp_f32 v{S(kt,qt)+i}, v{S(kt,qt)+i}" for i in range(4)]
    def cvt(kt, qt):
        b = S(kt & ~1, qt) + 2 * (kt & 1); s = S(kt, qt)
        return [f"v_cvt_pk_bf16_f32 v{b}, v{s}, v{s+1}", f"v_cvt_pk_bf16_f32 v{b+1}, v{s+2}, v{s+3}"]
    def half(u):
        a, b = 2 * u, 2 * u + 1
        return exp(a,0) + exp(b,0) + exp(a,1) + cvt(a,0) + exp(b,1) + cvt(b,0) + exp(a,2) + cvt(a,1) + exp(b,2) + cvt(b,1) + cvt(a,2) + cvt(b,2)
    def lm(u): return [f"{MF} {r4(LA(qt))}, {r4(ONES)}, {r4(S(2*u,qt))}, {'0' if u == 0 else r4(LA(qt))}" for qt in range(3)]
    def softmax():
        for x in half(0) + lm(0) + half(1) + lm(1): se(x)
    def refill(kind, p):
        r = []
        if p == 1:
            sp_l, back = lab("rq"), lab("rb")
            r += [f"s_cmp_eq_u32 {sIT}, 7", f"s_cbranch_scc1 {sp_l}"]
        if not o.nodma: r += [dma1(SK if kind == "K" else SV, sTILE, DK if kind == "K" else DV, j) for j in range(4)]
        if p == 1:
            r += [f"{back}:"]
            assert kind == "K"
            tail.append([f"{sp_l}:"] + [dma1(SQ, sQN, DK, j) for j in range(4)] + [f"s_branch {back}"])
        return r
    def prio_step():
        if o.prio != 1: return
        pl, pb, a, b = lab("pp"), lab("pb"), lab("pa"), lab("pa")
        e(f"s_add_u32 {sG}, {sG}, 1")
        e(f"s_cmp_eq_u32 {sG}, {sTH}")
        e(f"s_cbranch_scc1 {pl}")
        e(f"{pb}:")
        tail.append([f"{pl}:", f"s_cmp_eq_u32 {sG}, {th[0]}", f"s_cbranch_scc1 {a}", f"s_cmp_eq_u32 {sG}, {th[1]}", f"s_cbranch_scc1 {b}",
                     "s_setprio 0", f"s_branch {pb}", f"{a}:", "s_setprio 2", f"s_mov_b32 {sTH}, {th[1]}", f"s_branch {pb}",
                     f"{b}:", "s_setprio 1", f"s_mov_b32 {sTH}, {th[2]}", f"s_branch {pb}"])

    e("L_head:")
    X = [S(0, 0) + i for i in range(16)]
    AX = [S(2, 0) + i for i in range(12)]
    e(f"v_mbcnt_lo_u32_b32 v{X[8]}, -1, 0")
    e(f"v_mbcnt_hi_u32_b32 v{X[8]}, -1, v{X[8]}")
    e(f"v_and_b32 v{X[0]}, 15, v{X[8]}")
    e(f"v_lshrrev_b32 v{X[1]}, 4, v{X[8]}")
    e(f"v_lshlrev_b32 v{X[3]}, 8, v{X[0]}")
    e(f"s_cmp_eq_u32 {sH}, {o.nh}")
    e("s_cbranch_scc1 L_last")
    e(f"s_lshl_b32 {sT0}, {sW}, 2")
    e(f"v_and_b32 v{X[2]}, 3, v{X[0]}")
    e(f"v_add_u32 v{X[2]}, {sT0}, v{X[2]}")
    e(f"v_xor_b32 v{X[2]}, v{X[2]}, v{X[1]}")
    e(f"v_lshl_add_u32 v{X[9]}, v{X[2]}, 4, v{X[3]}")
    e(f"v_add_u32 v{X[9]}, {sW4K}, v{X[9]}")
    for ks in range(1, 4): e(f"v_xor_b32 v{AX[ks]}, {ks<<6}, v{X[9]}")
    for j in range(3):
        qpos = [0, 2, 4][j]
        if j == 2:
            for a in [X[9]] + AX[1:4]: e(f"v_add_u32 v{a}, {4*SLOT}, v{a}")
        e("s_waitcnt vmcnt(8)")
        for ks in range(4): e(f"ds_read_b128 {r4(Q(j,ks))}, v{X[9] if ks == 0 else AX[ks]} offset:{(qpos & 3)*SLOT}")
        if j < 2: e(f"s_add_u32 m0, {sW4K}, {qpos*SLOT}")
        e("s_waitcnt lgkmcnt(0)")
        if j < 2: dma(SK if j == 0 else SV, sKVN, DK if j == 0 else DV)
    for r in range(48):
        q = Q(0, 0) + r; t0 = CI(0) + 2 * (r % 3); t1 = t0 + 1
        e(f"v_lshlrev_b32 v{t0}, 16, v{q}")
        e(f"v_and_b32 v{t1}, 0xffff0000, v{q}")
        e(f"v_mul_f32 v{t0}, {sC}, v{t0}")
        e(f"v_mul_f32 v{t1}, {sC}, v{t1}")
        e(f"v_cvt_pk_bf16_f32 v{q}, v{t0}, v{t1}")
    e(f"s_cmp_eq_u32 {sH}, 0")
    e("s_cbranch_scc1 L_first")
    tail.append(["L_first:"] + [f"buffer_store_dwordx4 {r4(F(0))}, v{X[9]}, {SO}, {sOO} offen{nts}"] * 12 + ["s_branch L_ohead"])
    def oproc():
        e(f"s_add_u32 {sT1}, {sW4K}, {4*SLOT}")
        e(f"v_lshrrev_b32 v{X[2]}, 1, v{X[1]}")
        e(f"v_xor_b32 v{X[2]}, v{X[2]}, v{X[0]}")
        e(f"v_lshl_add_u32 v{X[2]}, v{X[2]}, 4, v{X[3]}")
        e(f"v_and_b32 v{X[5]}, 1, v{X[1]}")
        e(f"v_lshl_add_u32 v{X[6]}, v{X[5]}, 3, v{X[2]}")
        e(f"v_add_u32 v{AX[4]}, {sT1}, v{X[6]}")
        for T in range(1, 8): e(f"v_xor_b32 v{AX[4+T]}, {T<<5}, v{AX[4]}")
        e(f"v_xor_b32 v{X[2]}, v{X[0]}, v{X[1]}")
        e(f"v_lshlrev_b32 v{X[2]}, 4, v{X[2]}")
        e(f"v_lshl_add_u32 v{X[7]}, v{X[1]}, 8, v{X[2]}")
        e(f"v_add_u32 v{AX[0]}, {sT1}, v{X[7]}")
        for jj in range(1, 4): e(f"v_xor_b32 v{AX[jj]}, {jj<<6}, v{AX[0]}")
        e(f"v_lshlrev_b32 v{X[12]}, 4, v{X[8]}")
        e(f"v_add_u32 v{X[12]}, {sW4K}, v{X[12]}")
        RB = [[F(jj) for jj in range(4)], [S(1,1), S(1,2), S(3,0), S(3,1)], [F(jj) for jj in range(4)]]
        def stage(j):
            for T in range(8): e(f"ds_write_b64 v{AX[4+T]}, {r2(O(T, j))}")
            for jj in range(4): e(f"ds_read_b128 {r4(RB[j][jj])}, v{AX[jj]} offset:{jj*1024}")
        def store(j):
            e(f"s_add_u32 {sT0}, {sOO}, {j*SLOT}")
            for jj in range(4):
                e(f"s_waitcnt lgkmcnt({3-jj})")
                e(f"buffer_store_dwordx4 {r4(RB[j][jj])}, v{X[12]}, {SO}, {sT0} offen offset:{jj*1024}{nts}")
        for j in range(3): stage(j); store(j)
    oproc()
    e("L_ohead:")
    e(f"s_mov_b32 {sOO}, {sQN}")
    e(f"s_add_u32 {sTILE}, {sKVN}, {SLOT}")
    e(f"s_add_u32 {sH}, {sH}, 1")
    e(f"s_add_u32 {sKVN}, {sKVN}, 131072")
    e(f"s_add_u32 {sQN}, {sQN}, 49152")
    e(f"s_cmp_eq_u32 {sH}, {o.nh}")
    e(f"s_cselect_b32 {sKVN}, {OOB}, {sKVN}")
    e(f"s_cselect_b32 {sQN}, {OOB}, {sQN}")
    e(f"s_mov_b32 {sIT}, 0")
    if o.stamp:
        e("s_mov_b32 s61, s62")
        e("s_memrealtime s[62:63]")
        e("s_waitcnt lgkmcnt(0)")

    LM = [CI(qt) + 1 for qt in range(3)]; T1 = [CI(qt) + 2 for qt in range(3)]
    vals = [[S(kt, qt) + i for kt in range(4) for i in range(4)] for qt in range(3)]
    def rowmax():
        for qt in range(3):
            v = vals[qt]; se(f"v_max3_f32 v{LM[qt]}, v{v[0]}, v{v[1]}, v{v[2]}")
        for k in range(6):
            for qt in range(3):
                v = vals[qt]; se(f"v_max3_f32 v{LM[qt]}, v{LM[qt]}, v{v[3+2*k]}, v{v[4+2*k]}")
        for qt in range(3): se(f"v_max_f32 v{LM[qt]}, v{LM[qt]}, v{vals[qt][15]}")
        allreduce("v_max_f32", LM, T1)
        for qt in range(3): e(f"v_sub_f32 v{LM[qt]}, 0xc0e00000, v{LM[qt]}")
    def spread_shift():
        for qt in range(3):
            for i in (0, 2, 3): e(f"v_mov_b32 v{CI(qt)+i}, v{LM[qt]}")
        for qt in range(3):
            for x in vals[qt]: e(f"v_add_f32 v{x}, v{x}, v{CI(qt)}")
    def rescale():
        for qt in range(3): e(f"v_min_f32 v{LM[qt]}, v{LM[qt]}, v{CI(qt)}")
        for qt in range(3): e(f"v_sub_f32 v{T1[qt]}, v{LM[qt]}, v{CI(qt)}")
        for qt in range(3): e(f"v_exp_f32 v{T1[qt]}, v{T1[qt]}")
        e("s_nop 0")
        for qt in range(3): e(f"v_mul_f32 v{LR[qt]}, v{LR[qt]}, v{T1[qt]}")
        for T in range(8):
            for qt in range(3):
                for i in range(4): e(f"v_mul_f32 v{O(T,qt)+i}, v{O(T,qt)+i}, v{T1[qt]}")
    def ksync(p, vm):
        e(f"s_add_u32 m0, {sW4K}, {(1-p)*SLOT}")
        e(f"s_waitcnt vmcnt({vm})")
        e("s_barrier")
        pre(kread, p)
    def vsync(p, vm):
        e(f"s_add_u32 m0, {sW4K}, {(3-p)*SLOT}")
        e(f"s_waitcnt vmcnt({vm})")
        e("s_barrier")
        pre(vread, p)
    def vdma_list(): return [] if o.nodma else [dma1(SV, sTILE, DV, j) for j in range(4)]
    def kstep(p):
        ksync(p, 4)
        rf = refill("K", p)
        if o.kdma < 0:
            for x in rf: e(x)
        run(phase("K", kgroup(True), kread, p, {"after": {o.kdma: rf}} if o.kdma >= 0 else {}), LQ(KTAGS))
        softmax()
    def check(p):
        se(f"v_max3_f32 v{TM}, v{LA(0)}, v{LA(1)}, v{LA(2)}")
        e(f"v_cmp_nge_f32 vcc, {sLIM}, v{TM}")
        if not o.nodma: e(f"s_cbranch_vccnz L_redo{p}")
        e(f"L_pv{p}:")
        for qt in range(3): se(f"v_add_f32 v{LR[qt]}, v{LR[qt]}, v{LA(qt)}")
    def pv(p, zero=False, rf=None):
        run(phase("V", vgroup(zero), vread, p, {"after": {o.vdma: rf}} if rf else {}), LQ(VTAGS))
        e(f"s_add_u32 {sIT}, {sIT}, 1")
        e(f"s_add_u32 {sTILE}, {sTILE}, {SLOT}")
        prio_step()

    ksync(0, 16)
    dma(SK, sTILE, DK)
    run(phase("K", kgroup(False), kread, 0), LQ(KTAGS))
    rowmax()
    spread_shift()
    softmax()
    vsync(0, 16)
    for x in vdma_list(): e(x)
    for qt in range(3): se(f"v_mov_b32 v{LR[qt]}, v{LA(qt)}")
    pv(0, zero=True)
    e("L_loop:")
    kstep(1)
    vsync(1, 4)
    sp_l, back = lab("vq"), lab("vb")
    e(f"s_cmp_eq_u32 {sIT}, 7")
    e(f"s_cbranch_scc1 {sp_l}")
    for x in vdma_list(): e(x)
    e(f"{back}:")
    tail.append([f"{sp_l}:", f"s_add_u32 {sT0}, {sQN}, {SLOT}"] + [dma1(SQ, sT0, DK, j) for j in range(4)]
                + [f"s_add_u32 m0, {sW4K}, {4*SLOT}", f"s_add_u32 {sT0}, {sQN}, {2*SLOT}"] + [dma1(SQ, sT0, DK, j) for j in range(4)] + [f"s_branch {back}"])
    check(1)
    e(f"s_cmp_eq_u32 {sIT}, 7")
    e("s_cbranch_scc1 L_vlast")
    pv(1)
    kstep(0)
    vsync(0, 4)
    for x in vdma_list(): e(x)
    check(0)
    pv(0)
    e("s_branch L_loop")
    e("L_vlast:")
    for qt in range(3): e(f"v_rcp_f32 v{CI(qt)}, v{LR[qt]}")
    fl = []
    for T in range(8):
        for qt in range(3):
            b = O(T, qt)
            for i in range(4): fl.append((24 + 3*T + qt + 1, f"v_mul_f32 v{b+i}, v{b+i}, v{CI(qt)}"))
            fl.append((0, f"v_cvt_pk_bf16_f32 v{b}, v{b}, v{b+1}"))
            fl.append((0, f"v_cvt_pk_bf16_f32 v{b+1}, v{b+2}, v{b+3}"))
    run(phase("V", vgroup(False), vread, 1), LQ(VTAGS), fl, o.lbud)
    prio_step()
    e("s_branch L_head")
    for p in range(2):
        e(f"L_redo{p}:")
        e("s_waitcnt lgkmcnt(0)")
        pre(kread, p)
        run(phase("K", kgroup(False), kread, p), LQ(KTAGS))
        pre(vread, p)
        rowmax()
        rescale()
        spread_shift()
        softmax()
        e("s_nop 7")
        e(f"s_branch L_pv{p}")
    e("L_last:")
    e("s_waitcnt vmcnt(0)")
    oproc()
    e("s_branch L_fin")
    for blk in tail:
        for s in blk: e(s)
    e("L_fin:")
    if o.stamp:
        e("s_waitcnt vmcnt(0)")
        e("s_memrealtime s[52:53]")
        e("s_memtime s[54:55]")
        e("s_getreg_b32 s58, hwreg(HW_REG_XCC_ID)")
        e("s_getreg_b32 s59, hwreg(HW_REG_HW_ID)")
        e("s_waitcnt lgkmcnt(0)")
        e("s_lshl_b32 s60, s2, 2")
        e(f"s_add_u32 s60, s60, {sW}")
        e("s_lshl_b32 s60, s60, 5")
        e("v_mov_b32 v0, s48"); e("v_mov_b32 v1, s50"); e("v_mov_b32 v2, s52"); e("v_mov_b32 v3, s54")
        e("v_mov_b32 v4, s58"); e("v_mov_b32 v5, s59"); e("v_mov_b32 v6, s61"); e("v_mov_b32 v7, s62")
        e("v_mov_b32 v8, s60")
        e("global_store_dwordx4 v8, v[0:3], s[56:57]")
        e("global_store_dwordx4 v8, v[4:7], s[56:57] offset:16")
    e("L_end:")
    e("s_endpgm")
    L.append('.section .rodata,"a"')
    L.append(".p2align 6")
    L.append(f".amdhsa_kernel {o.name}_kernel")
    L.append("  .amdhsa_next_free_vgpr 256")
    L.append(f"  .amdhsa_next_free_sgpr {96 if o.stamp else 48}")
    L.append("  .amdhsa_accum_offset 256")
    L.append("  .amdhsa_group_segment_fixed_size 0")
    L.append("  .amdhsa_kernarg_size 48")
    L.append("  .amdhsa_user_sgpr_count 2")
    L.append("  .amdhsa_user_sgpr_kernarg_segment_ptr 1")
    L.append("  .amdhsa_system_sgpr_workgroup_id_x 1")
    L.append(".end_amdhsa_kernel")
    return "\n".join(L) + "\n"

if __name__ == "__main__":
    o = Opt()
    out = sys.argv[1]
    for a in sys.argv[2:]:
        k, v = a.split("=")
        cur = getattr(o, k)
        setattr(o, k, (v in ("1", "True", "true")) if isinstance(cur, bool) else type(cur)(v))
    txt = gen(o)
    open(out, "w").write(txt)
    b, n = hazard.check(txt)
    print(f"{out}: {n} instrs, {b} hazards")
```

```python
import sys, math, struct
import hazard

def f2u(x):
    return struct.unpack("<I", struct.pack("<f", x))[0]

class Opt:
    ldpol = "nt"
    stpol = "sc1"
    nh = 2
    nwg = 0
    prio = 1
    pth = "4,8,12"
    stamp = False
    nanfill = False
    nf = 4
    lbud = 16
    kdma = -1
    vdma = -1
    split = True
    nodma = False
    sched = ''
    php = ''
    phth = 8
    name = "standalone__gqa_softmax__near_ridge"

def cost(s):
    return 8 if s.startswith("v_exp") or s.startswith("v_rcp") else 4

def gen(o):
    L = []
    def e(s=""):
        L.append("    " + s if s and not s.endswith(":") else s)
    nwg = o.nwg or 1024 // o.nh
    SLOT = 16384; LDS = 5 * SLOT
    ntl = (" " + o.ldpol.replace("_", " ")) if o.ldpol not in ("", "none") else ""
    nts = (" " + o.stpol.replace("_", " ")) if o.stpol not in ("", "none") else ""
    NF = o.nf
    def O(T, qt): return (T * 3 + qt) * 4
    def LA(qt): return 96 + qt * 4
    def Q(qt, ks): return 108 + (qt * 4 + ks) * 4
    def S(kt, qt): return 156 + (kt * 3 + qt) * 4
    ONES = 204
    def CI(qt): return 208 + qt * 4
    def F(i): return 220 + (i % NF) * 4
    b0 = 220 + NF * 4
    DK, DV = b0, b0 + 1
    KA = [b0 + 2 + i for i in range(4)]
    VA = [b0 + 6 + i for i in range(8)]
    LR = [b0 + 14 + i for i in range(3)]
    TM = b0 + 17
    assert TM < 256
    def r4(b): return f"v[{b}:{b+3}]"
    def r2(b): return f"v[{b}:{b+1}]"
    SQ, SK, SV, SO = "s[4:7]", "s[8:11]", "s[12:15]", "s[16:19]"
    sW, sW4K, sTILE, sIT, sH = "s20", "s21", "s22", "s24", "s25"
    sKVN, sQN, sOO, sC, sG, sTH, sT0, sT1, sLIM = "s27", "s28", "s29", "s30", "s31", "s32", "s33", "s34", "s35"
    OOB = 0x40000000
    NQ, NK = 50331648, 134217728
    MF = "v_mfma_f32_16x16x32_bf16"
    uid = [0]
    def lab(p):
        uid[0] += 1
        return f"L_{p}_{uid[0]}"
    tail = []

    for ln in (
        "softmax(Q K^T / sqrt(128)) V, B=32 H=32 Sq=192 Sk=512 D=128, bf16 in / bf16 out (written with the author's own generator script).",
        "kernarg: q, k, v, out, debug, ws (8 bytes each).",
        "512 workgroups x 4 waves, two per CU; each workgroup does two heads, each wave 48 query rows (three 16-row tiles).",
        "S^T = K Q^T and O^T = V^T P^T with v_mfma_f32_16x16x32_bf16, so a lane owns one query column throughout.",
        "LDS (80 KiB): 16 KiB slots K0 K1 V0 V1 filled by LDS-DMA two slots ahead (XOR-swizzled source addresses), one staging slot",
        "for the output; Q of the next head travels through the same slots.",
        "Softmax: log2(e)/sqrt(128) is folded into Q once per head; the first key tile uses the exact row max; later tiles reuse the",
        "running max, and a per-tile check of the row sums (an MFMA against a ones fragment) falls back to recomputing the tile",
        "with the true running max (L_redo*) before anything is accumulated whenever a probability could exceed 2^8.",
        ): L.append("; " + ln)
    L.append(f"; @launch grid=({nwg},1,1) block=(256,1,1) lds={LDS}")
    L.append('.amdgcn_target "amdgcn-amd-amdhsa--gfx950"')
    L.append(".text")
    L.append(f".globl {o.name}_kernel")
    L.append(".p2align 8")
    L.append(f".type {o.name}_kernel,@function")
    L.append(f"{o.name}_kernel:")
    e(f"s_cmp_ge_u32 s2, {nwg}")
    e("s_cbranch_scc1 L_end")
    if o.stamp:
        e("s_memrealtime s[48:49]")
        e("s_memtime s[50:51]")
        e("s_load_dwordx2 s[56:57], s[0:1], 40")
    e("s_load_dwordx4 s[36:39], s[0:1], 0")
    e("s_load_dwordx4 s[40:43], s[0:1], 16")
    e("v_and_b32 v9, 63, v0")
    e("v_lshrrev_b32 v1, 6, v0")
    e("v_and_b32 v2, 15, v9")
    e(f"v_readfirstlane_b32 {sW}, v1")
    e("v_lshrrev_b32 v3, 4, v9")
    e("v_lshrrev_b32 v4, 2, v2")
    e("v_and_b32 v5, 3, v2")
    e(f"s_lshl_b32 {sW4K}, {sW}, 12")
    e(f"s_lshl_b32 {sT0}, {sW}, 2")
    e("v_lshlrev_b32 v6, 8, v3")
    e(f"v_add_u32 v6, {sW4K}, v6")
    e(f"v_add_u32 v7, {sT0}, v3")
    e("v_xor_b32 v7, v7, v2")
    e(f"v_lshl_add_u32 v{DK}, v7, 4, v6")
    e(f"s_mul_i32 {sT0}, s2, {o.nh}")
    e(f"s_lshl_b32 {sKVN}, {sT0}, 17")
    e(f"s_mul_i32 {sQN}, {sT0}, 49152")
    e(f"s_mov_b32 m0, {sW4K}")
    e(f"s_add_u32 {sT0}, {sQN}, {SLOT}")
    e(f"s_add_u32 {sT1}, {sQN}, {2*SLOT}")
    e(f"s_mov_b32 s6, {NQ}")
    e("s_mov_b32 s7, 0x20000")
    e("s_waitcnt lgkmcnt(0)")
    e("s_mov_b32 s4, s36")
    e("s_and_b32 s5, s37, 0xffff")
    def dma1(srd, soff, voff, j):
        off = f" offset:{1024*j}" if j else ""
        return f"buffer_load_dwordx4 v{voff}, {srd}, {soff} offen{off}{ntl} lds"
    def dma(srd, soff, voff):
        for j in range(4): e(dma1(srd, soff, voff, j))
    dma(SQ, sQN, DK)
    e(f"s_add_u32 m0, {sW4K}, {2*SLOT}")
    e("s_mov_b32 s8, s38")
    dma(SQ, sT0, DK)
    e(f"s_add_u32 m0, {sW4K}, {4*SLOT}")
    e("s_and_b32 s9, s39, 0xffff")
    dma(SQ, sT1, DK)
    e(f"s_mov_b32 s10, {NK}"); e("s_mov_b32 s11, 0x20000")
    for (b, p, n) in ((12, 40, NK), (16, 42, NQ)):
        e(f"s_mov_b32 s{b}, s{p}")
        e(f"s_and_b32 s{b+1}, s{p+1}, 0xffff")
        e(f"s_mov_b32 s{b+2}, {n}")
        e(f"s_mov_b32 s{b+3}, 0x20000")
    e(f"s_and_b32 {sT0}, {sW}, 1")
    e(f"s_lshl_b32 {sT0}, {sT0}, 2")
    e(f"v_add_u32 v7, {sT0}, v3")
    e("v_lshlrev_b32 v7, 1, v7")
    e("v_xor_b32 v7, v7, v2")
    e(f"v_lshl_add_u32 v{DV}, v7, 4, v6")
    e("v_lshlrev_b32 v6, 12, v4")
    e("v_lshl_add_u32 v6, v5, 8, v6")
    e("v_xor_b32 v7, v3, v2")
    e(f"v_lshl_add_u32 v{KA[0]}, v7, 4, v6")
    for ks in range(1, 4): e(f"v_xor_b32 v{KA[ks]}, {ks<<6}, v{KA[0]}")
    e("v_lshlrev_b32 v6, 12, v3")
    e("v_lshl_add_u32 v6, v4, 8, v6")
    e("v_and_b32 v7, 1, v3")
    e("v_lshl_add_u32 v7, v7, 2, v4")
    e("v_lshlrev_b32 v7, 1, v7")
    e("v_lshrrev_b32 v8, 1, v5")
    e("v_xor_b32 v7, v7, v8")
    e("v_lshl_add_u32 v6, v7, 4, v6")
    e("v_and_b32 v8, 1, v2")
    e("v_lshl_add_u32 v6, v8, 3, v6")
    e(f"v_add_u32 v{VA[0]}, {2*SLOT}, v6")
    for T in range(1, 8): e(f"v_xor_b32 v{VA[T]}, {T<<5}, v{VA[0]}")
    for i in range(4): e(f"v_mov_b32 v{ONES+i}, 0x3f803f80")
    e(f"s_mov_b32 {sC}, {hex(f2u(math.log2(math.e) / math.sqrt(128.0)))}")
    e(f"s_mov_b32 {sLIM}, 0x43800000")
    e(f"s_mov_b32 {sH}, 0")
    e(f"s_mov_b32 {sOO}, {sQN}")
    if o.stamp:
        e("s_mov_b32 s61, 0"); e("s_mov_b32 s62, 0")
    th = [int(x) for x in o.pth.split(",")]
    if o.sched:
        assert len(o.sched) == 16
        word = sum(int(c) << (2 * i) for i, c in enumerate(o.sched))
        e(f"s_setprio {o.sched[0]}"); e(f"s_mov_b32 {sG}, {hex(word)}"); e(f"s_mov_b32 {sTH}, {o.sched[0]}")
    elif o.prio == 1:
        e("s_setprio 3"); e(f"s_mov_b32 {sG}, 0"); e(f"s_mov_b32 {sTH}, {th[0]}")
    if o.nanfill:
        for i in list(range(108)) + LR: e(f"v_mov_b32 v{i}, 0x7fc00000")

    def allreduce(op, x, t):
        for a, b in zip(x, t): e(f"v_mov_b32 v{b}, v{a}")
        e("s_nop 1")
        for a, b in zip(x, t): e(f"v_permlane16_swap_b32 v{a}, v{b}")
        for a, b in zip(x, t): e(f"{op} v{a}, v{a}, v{b}")
        for a, b in zip(x, t): e(f"v_mov_b32 v{b}, v{a}")
        e("s_nop 1")
        for a, b in zip(x, t): e(f"v_permlane32_swap_b32 v{a}, v{b}")
        for a, b in zip(x, t): e(f"{op} v{a}, v{a}, v{b}")
    class LQ:
        def __init__(s, pre=()): s.q = list(pre)
        def read(s, tag): s.q.append(tag); assert len(s.q) <= 15, s.q
        def wait(s, tag):
            if tag not in s.q: return None
            i = len(s.q) - 1 - s.q[::-1].index(tag)
            n = len(s.q) - 1 - i
            s.q = s.q[i + 1:]
            return f"s_waitcnt lgkmcnt({n})"
    def short(text):
        c = hazard.I(text, 0); d = 0; miss = 0
        for ln in reversed(L):
            t = ln.strip()
            if t.endswith(":"): continue
            if t.startswith("s_branch") or t.startswith("s_endpgm") or d >= 13: break
            p = hazard.I(t, 0)
            miss = max(miss, hazard.need(p, c) - d)
            d += p.states
        return miss
    def se(x):
        m = short(x)
        if m > 0: e(f"s_nop {m-1}")
        e(x)
    def run(spine, lq, fillers=(), bud=0):
        q = list(fillers); j = -1; credit = 0
        for s in spine:
            if s[0] == "r": lq.read(s[1]); e(s[2]); continue
            if s[0] == "x":
                for x in s[1]: se(x) if not x.endswith(":") else e(x)
                continue
            if s[0] == "w":
                w = lq.wait(s[1])
                if w: e(w)
                continue
            se(s[1]); j += 1; credit += bud
            while q and q[0][0] <= j and credit > 0 and short(q[0][1]) <= 1:
                x = q.pop(0)[1]; se(x); credit -= cost(x)
            credit = min(credit, bud)
        for _, x in q: se(x)
    def kread(f, p):
        kt, ks = f >> 2, f & 3
        off = kt * 1024 + p * SLOT
        return [("r", f"K{f}", f"ds_read_b128 {r4(F(f))}, v{KA[ks]}" + (f" offset:{off}" if off else ""))]
    def vread(f, p):
        u, T = f >> 3, f & 7
        r = []
        for ee in range(2):
            off = 2048 * u + 1024 * ee + p * SLOT
            r.append(("r", f"V{f}", f"ds_read_b64_tr_b16 {r2(F(f)+2*ee)}, v{VA[T]}" + (f" offset:{off}" if off else "")))
        return r
    KTAGS = [f"K{f}" for f in range(NF)]
    VTAGS = [f"V{f}" for f in range(NF) for _ in range(2)]
    def pre(rd, p):
        for f in range(NF):
            for x in rd(f, p): e(x[2])
    def phase(n, group, own, p, extra={}):
        sp = []
        for f in range(16):
            if f in extra.get("before", {}): sp.append(("x", extra["before"][f]))
            sp.append(("w", f"{n}{f}"))
            sp += group(f)
            if f + NF < 16: sp += own(f + NF, p)
            if f in extra.get("after", {}): sp.append(("x", extra["after"][f]))
        return sp
    def kgroup(init):
        def g(f):
            kt, ks = f >> 2, f & 3
            return [("m", f"{MF} {r4(S(kt,qt))}, {r4(F(f))}, {r4(Q(qt,ks))}, {(r4(CI(qt)) if init else '0') if ks == 0 else r4(S(kt, qt))}") for qt in range(3)]
        return g
    def vgroup(zero):
        def g(f):
            u, T = f >> 3, f & 7
            return [("m", f"{MF} {r4(O(T,qt))}, {r4(F(f))}, {r4(S(2*u,qt))}, {'0' if zero and u == 0 else r4(O(T,qt))}") for qt in range(3)]
        return g
    def exp(kt, qt): return [f"v_exp_f32 v{S(kt,qt)+i}, v{S(kt,qt)+i}" for i in range(4)]
    def cvt(kt, qt):
        b = S(kt & ~1, qt) + 2 * (kt & 1); s = S(kt, qt)
        return [f"v_cvt_pk_bf16_f32 v{b}, v{s}, v{s+1}", f"v_cvt_pk_bf16_f32 v{b+1}, v{s+2}, v{s+3}"]
    def half(u):
        a, b = 2 * u, 2 * u + 1
        return exp(a,0) + exp(b,0) + exp(a,1) + cvt(a,0) + exp(b,1) + cvt(b,0) + exp(a,2) + cvt(a,1) + exp(b,2) + cvt(b,1) + cvt(a,2) + cvt(b,2)
    def lm(u): return [f"{MF} {r4(LA(qt))}, {r4(ONES)}, {r4(S(2*u,qt))}, {'0' if u == 0 else r4(LA(qt))}" for qt in range(3)]
    def setp(up):
        if not o.php: return
        a, b = lab("sp"), lab("sp")
        e(f"s_cmp_lt_u32 {sG}, {o.phth}")
        e(f"s_cbranch_scc1 {a}")
        e(f"s_setprio {up}")
        e(f"{b}:")
        tail.append([f"{a}:", f"s_setprio {2 + up}", f"s_branch {b}"])
    def softmax():
        setp(1 if o.php == "v" else 0)
        for x in half(0) + lm(0) + half(1) + lm(1): se(x)
        setp(0 if o.php == "v" else 1)
    def refill(kind, p):
        r = []
        if p == 1:
            sp_l, back = lab("rq"), lab("rb")
            r += [f"s_cmp_eq_u32 {sIT}, 7", f"s_cbranch_scc1 {sp_l}"]
        if not o.nodma: r += [dma1(SK if kind == "K" else SV, sTILE, DK if kind == "K" else DV, j) for j in range(4)]
        if p == 1:
            r += [f"{back}:"]
            assert kind == "K"
            tail.append([f"{sp_l}:"] + [dma1(SQ, sQN, DK, j) for j in range(4)] + [f"s_branch {back}"])
        return r
    def prio_step():
        if o.prio != 1: return
        if o.php:
            e(f"s_add_u32 {sG}, {sG}, 1"); return
        if o.sched:
            pl, pb = lab("pp"), lab("pb"); ls = [lab("pa") for _ in range(4)]
            e(f"s_lshr_b32 {sG}, {sG}, 2")
            e(f"s_and_b32 {sT0}, {sG}, 3")
            e(f"s_cmp_lg_u32 {sT0}, {sTH}")
            e(f"s_cbranch_scc1 {pl}")
            e(f"{pb}:")
            blk = [f"{pl}:", f"s_mov_b32 {sTH}, {sT0}"]
            for v in (1, 2, 3): blk += [f"s_cmp_eq_u32 {sT0}, {v}", f"s_cbranch_scc1 {ls[v]}"]
            blk += ["s_setprio 0", f"s_branch {pb}"]
            for v in (1, 2, 3): blk += [f"{ls[v]}:", f"s_setprio {v}", f"s_branch {pb}"]
            tail.append(blk)
            return
        pl, pb, a, b = lab("pp"), lab("pb"), lab("pa"), lab("pa")
        e(f"s_add_u32 {sG}, {sG}, 1")
        e(f"s_cmp_eq_u32 {sG}, {sTH}")
        e(f"s_cbranch_scc1 {pl}")
        e(f"{pb}:")
        tail.append([f"{pl}:", f"s_cmp_eq_u32 {sG}, {th[0]}", f"s_cbranch_scc1 {a}", f"s_cmp_eq_u32 {sG}, {th[1]}", f"s_cbranch_scc1 {b}",
                     "s_setprio 0", f"s_branch {pb}", f"{a}:", "s_setprio 2", f"s_mov_b32 {sTH}, {th[1]}", f"s_branch {pb}",
                     f"{b}:", "s_setprio 1", f"s_mov_b32 {sTH}, {th[2]}", f"s_branch {pb}"])

    e("L_head:")
    X = [S(0, 0) + i for i in range(16)]
    AX = [S(2, 0) + i for i in range(12)]
    e(f"v_mbcnt_lo_u32_b32 v{X[8]}, -1, 0")
    e(f"v_mbcnt_hi_u32_b32 v{X[8]}, -1, v{X[8]}")
    e(f"v_and_b32 v{X[0]}, 15, v{X[8]}")
    e(f"v_lshrrev_b32 v{X[1]}, 4, v{X[8]}")
    e(f"v_lshlrev_b32 v{X[3]}, 8, v{X[0]}")
    e(f"s_cmp_eq_u32 {sH}, {o.nh}")
    e("s_cbranch_scc1 L_last")
    e(f"s_lshl_b32 {sT0}, {sW}, 2")
    e(f"v_and_b32 v{X[2]}, 3, v{X[0]}")
    e(f"v_add_u32 v{X[2]}, {sT0}, v{X[2]}")
    e(f"v_xor_b32 v{X[2]}, v{X[2]}, v{X[1]}")
    e(f"v_lshl_add_u32 v{X[9]}, v{X[2]}, 4, v{X[3]}")
    e(f"v_add_u32 v{X[9]}, {sW4K}, v{X[9]}")
    for ks in range(1, 4): e(f"v_xor_b32 v{AX[ks]}, {ks<<6}, v{X[9]}")
    for j in range(3):
        qpos = [0, 2, 4][j]
        if j == 2:
            for a in [X[9]] + AX[1:4]: e(f"v_add_u32 v{a}, {4*SLOT}, v{a}")
        e("s_waitcnt vmcnt(8)")
        for ks in range(4): e(f"ds_read_b128 {r4(Q(j,ks))}, v{X[9] if ks == 0 else AX[ks]} offset:{(qpos & 3)*SLOT}")
        if j < 2: e(f"s_add_u32 m0, {sW4K}, {qpos*SLOT}")
        e("s_waitcnt lgkmcnt(0)")
        if j < 2: dma(SK if j == 0 else SV, sKVN, DK if j == 0 else DV)
    for r in range(48):
        q = Q(0, 0) + r; t0 = CI(0) + 2 * (r % 3); t1 = t0 + 1
        e(f"v_lshlrev_b32 v{t0}, 16, v{q}")
        e(f"v_and_b32 v{t1}, 0xffff0000, v{q}")
        e(f"v_mul_f32 v{t0}, {sC}, v{t0}")
        e(f"v_mul_f32 v{t1}, {sC}, v{t1}")
        e(f"v_cvt_pk_bf16_f32 v{q}, v{t0}, v{t1}")
    e(f"s_cmp_eq_u32 {sH}, 0")
    e("s_cbranch_scc1 L_ohead")
    def oproc():
        e(f"s_add_u32 {sT1}, {sW4K}, {4*SLOT}")
        e(f"v_lshrrev_b32 v{X[2]}, 1, v{X[1]}")
        e(f"v_xor_b32 v{X[2]}, v{X[2]}, v{X[0]}")
        e(f"v_lshl_add_u32 v{X[2]}, v{X[2]}, 4, v{X[3]}")
        e(f"v_and_b32 v{X[5]}, 1, v{X[1]}")
        e(f"v_lshl_add_u32 v{X[6]}, v{X[5]}, 3, v{X[2]}")
        e(f"v_add_u32 v{AX[4]}, {sT1}, v{X[6]}")
        for T in range(1, 8): e(f"v_xor_b32 v{AX[4+T]}, {T<<5}, v{AX[4]}")
        e(f"v_xor_b32 v{X[2]}, v{X[0]}, v{X[1]}")
        e(f"v_lshlrev_b32 v{X[2]}, 4, v{X[2]}")
        e(f"v_lshl_add_u32 v{X[7]}, v{X[1]}, 8, v{X[2]}")
        e(f"v_add_u32 v{AX[0]}, {sT1}, v{X[7]}")
        for jj in range(1, 4): e(f"v_xor_b32 v{AX[jj]}, {jj<<6}, v{AX[0]}")
        e(f"v_lshlrev_b32 v{X[12]}, 4, v{X[8]}")
        e(f"v_add_u32 v{X[12]}, {sW4K}, v{X[12]}")
        RB = [[F(jj) for jj in range(4)], [S(1,1), S(1,2), S(3,0), S(3,1)], [F(jj) for jj in range(4)]]
        def stage(j):
            for T in range(8): e(f"ds_write_b64 v{AX[4+T]}, {r2(O(T, j))}")
            for jj in range(4): e(f"ds_read_b128 {r4(RB[j][jj])}, v{AX[jj]} offset:{jj*1024}")
        def store(j):
            e(f"s_add_u32 {sT0}, {sOO}, {j*SLOT}")
            for jj in range(4):
                e(f"s_waitcnt lgkmcnt({3-jj})")
                e(f"buffer_store_dwordx4 {r4(RB[j][jj])}, v{X[12]}, {SO}, {sT0} offen offset:{jj*1024}{nts}")
        for j in range(3): stage(j); store(j)
    oproc()
    e("L_ohead:")
    e(f"s_mov_b32 {sOO}, {sQN}")
    e(f"s_add_u32 {sTILE}, {sKVN}, {SLOT}")
    e(f"s_add_u32 {sH}, {sH}, 1")
    e(f"s_add_u32 {sKVN}, {sKVN}, 131072")
    e(f"s_add_u32 {sQN}, {sQN}, 49152")
    e(f"s_cmp_eq_u32 {sH}, {o.nh}")
    e(f"s_cselect_b32 {sKVN}, {OOB}, {sKVN}")
    e(f"s_cselect_b32 {sQN}, {OOB}, {sQN}")
    e(f"s_mov_b32 {sIT}, 0")
    if o.stamp:
        e("s_mov_b32 s61, s62")
        e("s_memrealtime s[62:63]")
        e("s_waitcnt lgkmcnt(0)")

    LM = [CI(qt) + 1 for qt in range(3)]; T1 = [CI(qt) + 2 for qt in range(3)]
    vals = [[S(kt, qt) + i for kt in range(4) for i in range(4)] for qt in range(3)]
    def rowmax():
        for qt in range(3):
            v = vals[qt]; se(f"v_max3_f32 v{LM[qt]}, v{v[0]}, v{v[1]}, v{v[2]}")
        for k in range(6):
            for qt in range(3):
                v = vals[qt]; se(f"v_max3_f32 v{LM[qt]}, v{LM[qt]}, v{v[3+2*k]}, v{v[4+2*k]}")
        for qt in range(3): se(f"v_max_f32 v{LM[qt]}, v{LM[qt]}, v{vals[qt][15]}")
        allreduce("v_max_f32", LM, T1)
        for qt in range(3): e(f"v_sub_f32 v{LM[qt]}, 0xc0e00000, v{LM[qt]}")
    def spread_shift():
        for qt in range(3):
            for i in (0, 2, 3): e(f"v_mov_b32 v{CI(qt)+i}, v{LM[qt]}")
        for qt in range(3):
            for x in vals[qt]: e(f"v_add_f32 v{x}, v{x}, v{CI(qt)}")
    def rescale():
        for qt in range(3): e(f"v_min_f32 v{LM[qt]}, v{LM[qt]}, v{CI(qt)}")
        for qt in range(3): e(f"v_sub_f32 v{T1[qt]}, v{LM[qt]}, v{CI(qt)}")
        for qt in range(3): e(f"v_exp_f32 v{T1[qt]}, v{T1[qt]}")
        e("s_nop 0")
        for qt in range(3): e(f"v_mul_f32 v{LR[qt]}, v{LR[qt]}, v{T1[qt]}")
        for T in range(8):
            for qt in range(3):
                for i in range(4): e(f"v_mul_f32 v{O(T,qt)+i}, v{O(T,qt)+i}, v{T1[qt]}")
    def vmwait(vm):
        if vm == 4:
            e("s_waitcnt vmcnt(4)"); return
        a, b = lab("w1"), lab("wb")
        e(f"s_cmp_eq_u32 {sH}, 1")
        e(f"s_cbranch_scc1 {a}")
        e(f"s_waitcnt vmcnt({vm})")
        e(f"{b}:")
        tail.append([f"{a}:", "s_waitcnt vmcnt(4)", f"s_branch {b}"])
    def ksync(p, vm):
        e(f"s_add_u32 m0, {sW4K}, {(1-p)*SLOT}")
        vmwait(vm)
        e("s_barrier")
        pre(kread, p)
    def vsync(p, vm):
        e(f"s_add_u32 m0, {sW4K}, {(3-p)*SLOT}")
        vmwait(vm)
        e("s_barrier")
        pre(vread, p)
    def vdma_list(): return [] if o.nodma else [dma1(SV, sTILE, DV, j) for j in range(4)]
    def kstep(p):
        ksync(p, 4)
        rf = refill("K", p)
        if o.kdma < 0:
            for x in rf: e(x)
        run(phase("K", kgroup(True), kread, p, {"after": {o.kdma: rf}} if o.kdma >= 0 else {}), LQ(KTAGS))
        softmax()
    def check(p):
        se(f"v_max3_f32 v{TM}, v{LA(0)}, v{LA(1)}, v{LA(2)}")
        e(f"v_cmp_nge_f32 vcc, {sLIM}, v{TM}")
        if not o.nodma: e(f"s_cbranch_vccnz L_redo{p}")
        e(f"L_pv{p}:")
        for qt in range(3): se(f"v_add_f32 v{LR[qt]}, v{LR[qt]}, v{LA(qt)}")
    def pv(p, zero=False, rf=None):
        run(phase("V", vgroup(zero), vread, p, {"after": {o.vdma: rf}} if rf else {}), LQ(VTAGS))
        e(f"s_add_u32 {sIT}, {sIT}, 1")
        e(f"s_add_u32 {sTILE}, {sTILE}, {SLOT}")
        prio_step()

    ksync(0, 16)
    dma(SK, sTILE, DK)
    run(phase("K", kgroup(False), kread, 0), LQ(KTAGS))
    rowmax()
    spread_shift()
    softmax()
    vsync(0, 16)
    for x in vdma_list(): e(x)
    for qt in range(3): se(f"v_mov_b32 v{LR[qt]}, v{LA(qt)}")
    pv(0, zero=True)
    e("L_loop:")
    kstep(1)
    vsync(1, 4)
    sp_l, back = lab("vq"), lab("vb")
    e(f"s_cmp_eq_u32 {sIT}, 7")
    e(f"s_cbranch_scc1 {sp_l}")
    for x in vdma_list(): e(x)
    e(f"{back}:")
    tail.append([f"{sp_l}:", f"s_add_u32 {sT0}, {sQN}, {SLOT}"] + [dma1(SQ, sT0, DK, j) for j in range(4)]
                + [f"s_add_u32 m0, {sW4K}, {4*SLOT}", f"s_add_u32 {sT0}, {sQN}, {2*SLOT}"] + [dma1(SQ, sT0, DK, j) for j in range(4)] + [f"s_branch {back}"])
    check(1)
    e(f"s_cmp_eq_u32 {sIT}, 7")
    e("s_cbranch_scc1 L_vlast")
    pv(1)
    kstep(0)
    vsync(0, 4)
    for x in vdma_list(): e(x)
    check(0)
    pv(0)
    e("s_branch L_loop")
    e("L_vlast:")
    for qt in range(3): e(f"v_rcp_f32 v{CI(qt)}, v{LR[qt]}")
    fl = []
    for T in range(8):
        for qt in range(3):
            b = O(T, qt)
            for i in range(4): fl.append((24 + 3*T + qt + 1, f"v_mul_f32 v{b+i}, v{b+i}, v{CI(qt)}"))
            fl.append((0, f"v_cvt_pk_bf16_f32 v{b}, v{b}, v{b+1}"))
            fl.append((0, f"v_cvt_pk_bf16_f32 v{b+1}, v{b+2}, v{b+3}"))
    run(phase("V", vgroup(False), vread, 1), LQ(VTAGS), fl, o.lbud)
    prio_step()
    e("s_branch L_head")
    for p in range(2):
        e(f"L_redo{p}:")
        e("s_waitcnt lgkmcnt(0)")
        pre(kread, p)
        run(phase("K", kgroup(False), kread, p), LQ(KTAGS))
        pre(vread, p)
        rowmax()
        rescale()
        spread_shift()
        softmax()
        e("s_nop 7")
        e(f"s_branch L_pv{p}")
    e("L_last:")
    e("s_waitcnt vmcnt(0)")
    oproc()
    e("s_branch L_fin")
    for blk in tail:
        for s in blk: e(s)
    e("L_fin:")
    if o.stamp:
        e("s_waitcnt vmcnt(0)")
        e("s_memrealtime s[52:53]")
        e("s_memtime s[54:55]")
        e("s_getreg_b32 s58, hwreg(HW_REG_XCC_ID)")
        e("s_getreg_b32 s59, hwreg(HW_REG_HW_ID)")
        e("s_waitcnt lgkmcnt(0)")
        e("s_lshl_b32 s60, s2, 2")
        e(f"s_add_u32 s60, s60, {sW}")
        e("s_lshl_b32 s60, s60, 5")
        e("v_mov_b32 v0, s48"); e("v_mov_b32 v1, s50"); e("v_mov_b32 v2, s52"); e("v_mov_b32 v3, s54")
        e("v_mov_b32 v4, s58"); e("v_mov_b32 v5, s59"); e("v_mov_b32 v6, s61"); e("v_mov_b32 v7, s62")
        e("v_mov_b32 v8, s60")
        e("global_store_dwordx4 v8, v[0:3], s[56:57]")
        e("global_store_dwordx4 v8, v[4:7], s[56:57] offset:16")
    e("L_end:")
    e("s_endpgm")
    L.append('.section .rodata,"a"')
    L.append(".p2align 6")
    L.append(f".amdhsa_kernel {o.name}_kernel")
    L.append("  .amdhsa_next_free_vgpr 256")
    L.append(f"  .amdhsa_next_free_sgpr {96 if o.stamp else 48}")
    L.append("  .amdhsa_accum_offset 256")
    L.append("  .amdhsa_group_segment_fixed_size 0")
    L.append("  .amdhsa_kernarg_size 48")
    L.append("  .amdhsa_user_sgpr_count 2")
    L.append("  .amdhsa_user_sgpr_kernarg_segment_ptr 1")
    L.append("  .amdhsa_system_sgpr_workgroup_id_x 1")
    L.append(".end_amdhsa_kernel")
    return "\n".join(L) + "\n"

if __name__ == "__main__":
    o = Opt()
    out = sys.argv[1]
    for a in sys.argv[2:]:
        k, v = a.split("=")
        cur = getattr(o, k)
        setattr(o, k, (v in ("1", "True", "true")) if isinstance(cur, bool) else type(cur)(v))
    txt = gen(o)
    open(out, "w").write(txt)
    b, n = hazard.check(txt)
    print(f"{out}: {n} instrs, {b} hazards")
```
